```python
import torch

def _softmax(x, axis=-1):
    return torch.softmax(x, dim=axis)
def _gelu(x):
    return torch.nn.functional.gelu(x, approximate="tanh")
def _silu(x):
    return torch.nn.functional.silu(x)
def _sigmoid(x):
    return torch.sigmoid(x)
def _layernorm(x, axis=-1, eps=1e-5):
    m = x.mean(dim=axis, keepdim=True)
    v = x.var(dim=axis, keepdim=True, unbiased=False)
    return (x - m) / torch.sqrt(v + eps)
def _scatter_add(tgt, idx, src, axis=0):
    return tgt.clone().index_add_(axis, idx, src)
def _segment_sum(src, seg, n):
    out = torch.zeros((n,) + src.shape[1:], dtype=src.dtype)
    return out.index_add_(0, seg, src)
def _pad(x, pw):
    flat = tuple(v for pair in reversed(pw) for v in pair)
    return torch.nn.functional.pad(x, flat)

kernel_name = 'standalone__mha_block_cached__near_ridge'

def setup_inputs():

    _w = (lambda a: (lambda t: t.to(torch.bfloat16) if t.is_floating_point() else t)(torch.as_tensor(a)))
    B, Sq, D = 32, 160, 576
    H, Sk, Dh = 32, 512, 128
    return {
        "x": _w((lambda *s: torch.randn(*s, dtype=torch.bfloat16) * 0.8)(B, Sq, D)),
        "k_cache": _w((lambda *s: torch.randn(*s, dtype=torch.bfloat16) * 0.8)(B, H, Sk, Dh)),
        "v_cache": _w((lambda *s: torch.randn(*s, dtype=torch.bfloat16) * 0.05)(B, H, Sk, Dh)),
        "wq": _w((lambda *s: torch.randn(*s, dtype=torch.bfloat16) * 0.8)(D, H * Dh) * (D ** -0.5)),
        "wo": _w((lambda *s: torch.randn(*s, dtype=torch.bfloat16) * 0.05)(H * Dh, D) * ((H * Dh) ** -0.5)),
    }

def reference(x, k_cache, v_cache, wq, wo):
    B, Sq, D = x.shape
    H, Dh = 32, 128
    q = (lambda x, *d: x.permute(*d))((x @ wq).reshape(B, Sq, H, Dh), 0, 2, 1, 3)
    scores = torch.einsum("bhqd,bhkd->bhqk", q, k_cache) * (Dh ** -0.5)
    p = _softmax(scores, axis=-1)
    o = torch.einsum("bhqk,bhkd->bhqd", p, v_cache)
    return (lambda x, *d: x.permute(*d))(o, 0, 2, 1, 3).reshape(B, Sq, H * Dh) @ wo
```

```python
import re

def vr(a, n=1):
    return f"v{a}" if n == 1 else f"v[{a}:{a+n-1}]"
def sr(a, n=1):
    return f"s{a}" if n == 1 else f"s[{a}:{a+n-1}]"
def V(a, n=1):
    return [('v', a + i) for i in range(n)]
def S(a, n=1):
    return [('s', a + i) for i in range(n)]

class Ins:
    __slots__ = ('text', 'kind', 'rd', 'wr', 'ab', 'c', 'tag', 'ws', 'passes')
    def __init__(self, text, kind, rd=(), wr=(), ab=(), c=(), tag=None, ws=1, passes=4):
        self.text = text; self.kind = kind
        self.rd = set(rd) | set(ab) | set(c); self.wr = set(wr)
        self.ab = set(ab); self.c = set(c); self.tag = tag; self.ws = ws; self.passes = passes

VALU_KINDS = ('valu', 'trans', 'perm')

class Prog:
    def __init__(self):
        self.out = []
        self.hist = []
        self.lgkm = []
        self.vm = []
        self.nins = 0
        self.stats = {}
    def raw(self, text):
        self.out.append(text)
    def label(self, name):
        self.out.append(name + ":")
    def comment(self, t):
        self.out.append("    ; " + t)
    def _put(self, ins):
        self.out.append("    " + ins.text)
        self.hist.append(ins)
        if len(self.hist) > 40:
            self.hist.pop(0)
        self.nins += 1
        self.stats[ins.kind] = self.stats.get(ins.kind, 0) + 1
    def nop(self, n):
        while n > 0:
            k = min(n, 16)
            self._put(Ins(f"s_nop {k-1}", 'nop', ws=k))
            n -= k
    def flush_hazards(self, n=12):
        self.nop(n)
    def wait(self, vm=None, lgkm=None):
        parts = []
        if vm is not None and vm < len(self.vm):
            parts.append(f"vmcnt({vm})")
            self.vm = self.vm[len(self.vm) - vm:] if vm > 0 else []
        if lgkm is not None and lgkm < len(self.lgkm):
            parts.append(f"lgkmcnt({lgkm})")
            self.lgkm = self.lgkm[len(self.lgkm) - lgkm:] if lgkm > 0 else []
        if parts:
            self._put(Ins("s_waitcnt " + " ".join(parts), 'wait'))
    def wait_tag(self, tag, lgkm=None):
        idx = -1
        for i, (d, t) in enumerate(self.vm):
            if t == tag:
                idx = i
        vm = None
        if idx >= 0:
            vm = len(self.vm) - 1 - idx
        self.wait(vm=vm, lgkm=lgkm)
    def _auto_wait(self, ins):
        touched = ins.rd | ins.wr
        vm = None; lg = None
        for i, (d, t) in enumerate(self.vm):
            if d & touched:
                vm = len(self.vm) - 1 - i
        for i, d in enumerate(self.lgkm):
            if d & touched:
                lg = len(self.lgkm) - 1 - i
        if vm is not None and vm > 63: vm = 63
        if lg is not None and lg > 15: lg = 15
        self.wait(vm=vm, lgkm=lg)
    def _hazard(self, ins):
        need = 0
        dist = 0
        for p in reversed(self.hist):
            req = 0
            if p.kind in VALU_KINDS:
                if ins.kind == 'mfma' and (p.wr & ins.rd): req = max(req, 2)
                if ins.kind == 'perm' and (p.wr & ins.rd): req = max(req, 2)
                if p.kind == 'trans' and ins.kind in ('valu', 'perm', 'vmem', 'store', 'ds', 'dma') and (p.wr & ins.rd): req = max(req, 1)
                sw = {r for r in p.wr if r[0] == 's'}
                if sw & ins.rd:
                    if ins.kind in ('vmem', 'store', 'dma'): req = max(req, 5)
                    elif ins.kind in VALU_KINDS or ins.kind == 'mfma': req = max(req, 2)
                    else: req = max(req, 2)
                if ins.text.startswith('v_readfirstlane') or ins.text.startswith('v_readlane'):
                    if p.wr & ins.rd: req = max(req, 1)
            elif p.kind == 'mfma':
                big = 8 if p.passes == 4 else 12
                ov = 6 if p.passes == 4 else 10
                war = 3 if p.passes == 4 else 7
                if ins.kind == 'mfma':
                    if p.wr & ins.ab: req = max(req, big)
                    if p.wr & ins.c:
                        if not (p.wr == ins.c and p.passes == ins.passes): req = max(req, ov)
                    elif p.wr & ins.wr: req = max(req, ov)
                else:
                    if p.wr & (ins.rd | ins.wr): req = max(req, big)
                    if ins.kind in VALU_KINDS and (p.c & ins.wr): req = max(req, war)
            elif p.kind == 'salu':
                if ('s', 'm0') in p.wr and ins.kind == 'dma': req = max(req, 1)
            elif p.kind == 'store':
                if p.rd & ins.wr: req = max(req, 2)
            if req - dist > need:
                need = req - dist
            dist += p.ws
            if dist > 20: break
        if need > 0:
            self.nop(need)
    def emit(self, ins):
        self._auto_wait(ins)
        self._hazard(ins)
        self._put(ins)
        if ins.kind == 'ds':
            self.lgkm.append(set(ins.wr))
        elif ins.kind in ('vmem', 'store', 'dma'):
            self.vm.append((set(ins.wr), ins.tag))
            assert len(self.vm) <= 63, "too many vmem outstanding"
def mfma16(d, a, b, c):
    if c is None:
        return Ins(f"v_mfma_f32_16x16x32_bf16 {vr(d,4)}, {vr(a,4)}, {vr(b,4)}, 0", 'mfma', wr=V(d,4), ab=V(a,4)+V(b,4))
    return Ins(f"v_mfma_f32_16x16x32_bf16 {vr(d,4)}, {vr(a,4)}, {vr(b,4)}, {vr(c,4)}", 'mfma', wr=V(d,4), ab=V(a,4)+V(b,4), c=V(c,4))
def _opnd(x):
    if isinstance(x, tuple): return f"{x[0]}{x[1]}", [x]
    return str(x), []
def valu(op, d, *srcs, kind='valu', extra_rd=(), extra_wr=(), mods=''):
    txt = []; rd = []
    for s_ in srcs:
        t, r = _opnd(s_); txt.append(t); rd += r
    dt, dw = _opnd(d)
    return Ins(f"{op} {dt}, " + ", ".join(txt) + mods, kind, rd=rd + list(extra_rd), wr=dw + list(extra_wr))
def v(i): return ('v', i)
def s(i): return ('s', i)
def salu(text, rd=(), wr=()):
    return Ins(text, 'salu', rd=rd, wr=wr)
def ds_read_b128(d, a, off):
    return Ins(f"ds_read_b128 {vr(d,4)}, v{a} offset:{off}", 'ds', rd=V(a), wr=V(d,4))
def ds_read_tr(d, a, off):
    return Ins(f"ds_read_b64_tr_b16 {vr(d,2)}, v{a} offset:{off}", 'ds', rd=V(a), wr=V(d,2))
def ds_write_b128(a, d, off):
    return Ins(f"ds_write_b128 v{a}, {vr(d,4)} offset:{off}", 'ds', rd=V(a)+V(d,4))
def buf_load4(d, voff, srd, soff, off=0, tag=None, flags=''):
    so, sr_ = _opnd(soff)
    return Ins(f"buffer_load_dwordx4 {vr(d,4)}, v{voff}, {sr(srd,4)}, {so} offen offset:{off}{flags}", 'vmem',
               rd=V(voff)+S(srd,4)+sr_, wr=V(d,4), tag=tag)
def buf_dma4(voff, srd, soff, off=0, tag=None, flags=''):
    so, sr_ = _opnd(soff)
    return Ins(f"buffer_load_dwordx4 v{voff}, {sr(srd,4)}, {so} offen offset:{off}{flags} lds", 'dma',
               rd=V(voff)+S(srd,4)+sr_+[('s','m0')], tag=tag)
def buf_store(d, n, voff, srd, soff, off=0, tag=None, flags=''):
    so, sr_ = _opnd(soff)
    nm = {1: 'dword', 2: 'dwordx2', 4: 'dwordx4'}[n]
    return Ins(f"buffer_store_{nm} {vr(d,n)}, v{voff}, {sr(srd,4)}, {so} offen offset:{off}{flags}", 'store',
               rd=V(voff)+S(srd,4)+sr_+V(d,n), tag=tag)
def permswap(which, a, b):
    return Ins(f"v_permlane{which}_swap_b32 v{a}, v{b}", 'perm', rd=V(a)+V(b), wr=V(a)+V(b))
def barrier():
    return Ins("s_barrier", 'bar')
def ar(a, n=1):
    return f"a{a}" if n == 1 else f"a[{a}:{a+n-1}]"
def A(a, n=1):
    return [('a', a + i) for i in range(n)]
def mfma16a(d, a, b, zero=False):
    if zero:
        return Ins(f"v_mfma_f32_16x16x32_bf16 {ar(d,4)}, {vr(a,4)}, {vr(b,4)}, 0", 'mfma', wr=A(d,4), ab=V(a,4)+V(b,4))
    return Ins(f"v_mfma_f32_16x16x32_bf16 {ar(d,4)}, {vr(a,4)}, {vr(b,4)}, {ar(d,4)}", 'mfma', wr=A(d,4), ab=V(a,4)+V(b,4), c=A(d,4))
def ds_write_b128a(a, d, off):
    return Ins(f"ds_write_b128 v{a}, {ar(d,4)} offset:{off}", 'ds', rd=V(a)+A(d,4))
def accread(d, a):
    return Ins(f"v_accvgpr_read_b32 v{d}, a{a}", 'valu', rd=A(a), wr=V(d))
def buf_load_d16(d, hi, voff, srd, soff, off=0, tag=None):
    so, sr_ = _opnd(soff)
    nm = "buffer_load_short_d16_hi" if hi else "buffer_load_short_d16"
    return Ins(f"{nm} v{d}, v{voff}, {sr(srd,4)}, {so} offen offset:{off}", 'vmem',
               rd=V(voff)+S(srd,4)+sr_, wr=V(d), tag=tag)

def buf_load_u16(d, voff, srd, soff, off=0, tag=None):
    so, sr_ = _opnd(soff)
    return Ins(f"buffer_load_ushort v{d}, v{voff}, {sr(srd,4)}, {so} offen offset:{off}", 'vmem',
               rd=V(voff)+S(srd,4)+sr_, wr=V(d), tag=tag)
```

```python
from asmlib import *
import math

NSTAGE_RING = 4
C_SCALE = math.log2(math.e) / math.sqrt(128.0)
import struct
def f32bits(x): return "0x%08x" % struct.unpack('<I', struct.pack('<f', x))[0]

sX, sK, sV, sWQ, sO = 20, 24, 28, 32, 36
sSOFF = 40; sW2048 = 41; sTHR = 42; sSCL = 44
sXR = 46
sOR = 50
sRET = 54
sWO = 68; sWT = 72; sWOB = 76; sWOF = 77
vWOD = 92; vWOA = 116
WOFF = 48 << 20
vDKV, vDWQ, vXO = 1, 2, 3
vKA = 4; vTA = 8; vL = 16; vLS = 19; vT = 22
vACC = 28; vQF = 124; vS = 172; vP = 196; vNM = 220; vPOOL = 232
NPOOL = 6

def tiles_of_stage(n):
    if n <= 8: return [('W', 2*n), ('W', 2*n+1)]
    if n == 9: return [('K', 0), ('K', 1)]
    if n <= 23: return [('V', n-10), ('K', n-8)]
    return [('V', 14), ('V', 15)]

def gen_body(p, NT, name, opts):
    ACC = lambda t, n: vACC + (t*NT + n)*4
    QF = lambda s_, n: vQF + (s_*NT + n)*4
    Sx = lambda kt, n: vS + (kt*NT + n)*4
    Px = lambda pb, n: vP + (pb*NT + n)*4
    NM = lambda n: vNM + n*4
    XF = lambda ks, n: vQF + ((ks % 8)*NT + n)*4
    kvflags = opts.get('kvflags', '')

    def issue_dma(n):
        if n > 24: return
        for ti, (kind, idx) in enumerate(tiles_of_stage(n)):
            slot = (n % NSTAGE_RING)*16384 + ti*8192
            p.emit(salu(f"s_add_u32 m0, s{sW2048}, {slot}", rd=S(sW2048), wr=[('s','m0')]))
            if kind == 'W':
                p.emit(salu(f"s_mov_b32 s{sSOFF}, {idx*32*8192}", wr=S(sSOFF)))
                p.emit(buf_dma4(vDWQ, sWQ, s(sSOFF), 0, tag=('dma', n)))
                p.emit(salu(f"s_mov_b32 s{sSOFF}, {idx*32*8192 + 4*8192 - 1024}", wr=S(sSOFF)))
                p.emit(buf_dma4(vDWQ, sWQ, s(sSOFF), 1024, tag=('dma', n)))
            else:
                srd = sK if kind == 'K' else sV
                p.emit(salu(f"s_mov_b32 s{sSOFF}, {idx*8192}", wr=S(sSOFF)))
                p.emit(buf_dma4(vDKV, srd, s(sSOFF), 0, tag=('dma', n), flags=kvflags))
                p.emit(buf_dma4(vDKV, srd, s(sSOFF), 1024, tag=('dma', n), flags=kvflags))
    def xloads(ks):
        if ks >= 18: return []
        return [buf_load4(XF(ks, n), vXO, sX, s(sXR+n), ks*64) for n in range(NT)]

    def exp_list(pb, kt, first_in_tile):
        pairs = []
        for n in range(NT):
            for hp in range(2):
                pairs.append((n, hp))
        e = []; post = []
        res = []
        for i, (n, hp) in enumerate(pairs):
            ta = vT + ((i + kt*len(pairs)) % 3)*2; tb = ta + 1
            src = Sx(kt, n) + 2*hp
            ex = [valu("v_exp_f32", v(ta), v(src), kind='trans'), valu("v_exp_f32", v(tb), v(src+1), kind='trans')]
            po = [valu("v_cvt_pk_bf16_f32", v(Px(pb, n) + 2*kt + hp), v(ta), v(tb))]
            if kt == 0 and hp == 0:
                po.append(valu("v_add_f32", v(vLS+n), v(ta), v(tb)))
            else:
                po.append(valu("v_add_f32", v(vLS+n), v(vLS+n), v(ta)))
                po.append(valu("v_add_f32", v(vLS+n), v(vLS+n), v(tb)))
            res += ex
            res += post
            post = po
        res += post
        return res
    def rowmax(n, d, t):
        a = Sx(0, n); b = Sx(1, n)
        L = [valu("v_max3_f32", v(d), v(a), v(a+1), v(a+2)),
             valu("v_max3_f32", v(t), v(a+3), v(b), v(b+1)),
             valu("v_max3_f32", v(d), v(d), v(b+2), v(b+3)),
             valu("v_max_f32", v(d), v(d), v(t)),
             valu("v_mov_b32", v(t), v(d)),
             permswap(32, d, t),
             valu("v_max_f32", v(d), v(d), v(t)),
             valu("v_mov_b32", v(t), v(d)),
             permswap(16, d, t),
             valu("v_max_f32", v(d), v(d), v(t))]
        return L
    def lsum_update():
        return [valu("v_add_f32", v(vL+n), v(vL+n), v(vLS+n)) for n in range(NT)]

    fill = []
    site = [0]
    def check(pb):
        while fill: p.emit(fill.pop(0))
        if NT == 3:
            p.emit(valu("v_max3_f32", v(vT), v(vLS), v(vLS+1), v(vLS+2)))
        else:
            p.emit(valu("v_max_f32", v(vT), v(vLS), v(vLS+1)))
        p.emit(Ins(f"v_cmp_nge_f32 vcc, s{sTHR}, v{vT}", 'valu', rd=V(vT)+S(sTHR), wr=[('s','vcc')]))
        p.nop(1)
        lab = f"{name}_skip{site[0]}"; site[0] += 1
        p.emit(Ins(f"s_cbranch_vccz {lab}", 'salu', rd=[]))
        p.emit(Ins(f"s_call_b64 {sr(sRET,2)}, {name}_rare{pb}", 'salu'))
        p.label(lab)
        fill.extend(lsum_update())

    def first_softmax():
        for n in range(NT):
            for i_ in rowmax(n, vT, vT+1): p.emit(i_)
            for i in range(4):
                p.emit(valu("v_sub_f32", v(NM(n)+i), 0, v(vT)))
            for kt in range(2):
                for i in range(4):
                    p.emit(valu("v_sub_f32", v(Sx(kt,n)+i), v(Sx(kt,n)+i), v(vT)))
        for kt in range(2):
            for i_ in exp_list(0, kt, True): p.emit(i_)
        for n in range(NT):
            p.emit(valu("v_mov_b32", v(vL+n), v(vLS+n)))

    def q_convert():
        for s_ in range(4):
            for n in range(NT):
                a = ACC(2*s_, n); b = ACC(2*s_+1, n)
                for base in (a, b):
                    for i in (0, 2):
                        p.emit(Ins(f"v_pk_mul_f32 {vr(base+i,2)}, {vr(base+i,2)}, {sr(sSCL,2)}", 'valu',
                                   rd=V(base+i,2)+S(sSCL,2), wr=V(base+i,2)))
            for n in range(NT):
                a = ACC(2*s_, n); b = ACC(2*s_+1, n); q = QF(s_, n)
                p.emit(valu("v_cvt_pk_bf16_f32", v(q), v(a), v(a+1)))
                p.emit(valu("v_cvt_pk_bf16_f32", v(q+1), v(a+2), v(a+3)))
                p.emit(valu("v_cvt_pk_bf16_f32", v(q+2), v(b), v(b+1)))
                p.emit(valu("v_cvt_pk_bf16_f32", v(q+3), v(b+2), v(b+3)))
            for n in range(NT):
                q = QF(s_, n)
                p.emit(permswap(32, q, q+2)); p.emit(permswap(32, q+1, q+3))
            for n in range(NT):
                q = QF(s_, n)
                p.emit(permswap(16, q, q+2)); p.emit(permswap(16, q+1, q+3))

    FU = []
    for n in range(25):
        for ti, (kind, idx) in enumerate(tiles_of_stage(n)):
            slot = (n % NSTAGE_RING)*16384 + ti*8192
            for f in range(8):
                d = dict(stage=n, kind=kind, idx=idx, f=f, pre=[], post=[])
                if kind in 'WV':
                    t = f
                    d['reads'] = (lambda r, t=t, slot=slot: [ds_read_tr(r, vTA+t, slot), ds_read_tr(r+2, vTA+t, slot+1024)])
                    if kind == 'W':
                        d['mf'] = (lambda r, t=t, idx=idx: [mfma16(ACC(t,n_), r, XF(idx,n_), None if idx == 0 else ACC(t,n_)) for n_ in range(NT)])
                    else:
                        d['mf'] = (lambda r, t=t, idx=idx: [mfma16(ACC(t,n_), r, Px(idx%2,n_), None if idx == 0 else ACC(t,n_)) for n_ in range(NT)])
                else:
                    kt, s_ = f // 4, f % 4
                    d['reads'] = (lambda r, kt=kt, s_=s_, slot=slot: [ds_read_b128(r, vKA+s_, slot+kt*1024)])
                    def mf(r, kt=kt, s_=s_, idx=idx):
                        return [mfma16(Sx(kt,n_), r, QF(s_,n_), (None if idx == 0 else NM(n_)) if s_ == 0 else Sx(kt,n_)) for n_ in range(NT)]
                    d['mf'] = mf
                FU.append(d)
    def find(kind, idx, f):
        for i, d in enumerate(FU):
            if d['kind'] == kind and d['idx'] == idx and d['f'] == f: return i
        raise KeyError
    for ks in range(18):
        FU[find('W', ks, 7)]['post'].append(lambda ks=ks: fill.extend(xloads(ks+8)))
    FU[find('K', 0, 0)]['pre'].append(q_convert)
    FU[find('K', 1, 0)]['pre'].append(first_softmax)
    deadline = {}
    for j in range(1, 16):
        i0 = find('K', j, 4)
        FU[i0]['post'].append(lambda j=j: fill.extend(exp_list(j%2, 0, True)))
        i1 = find('K', j, 7) + 1
        FU[i1]['post'].append(lambda j=j: fill.extend(exp_list(j%2, 1, False)))
        ic = find('K', j+1, 0) if j < 15 else find('V', 15, 0)
        FU[ic]['pre'].append(lambda j=j: check(j%2))
        for i in range(i0, ic): deadline[i] = (i0, i1, ic)

    issue_dma(0)
    for ks in range(2):
        for i_ in xloads(ks): p.emit(i_)
    issue_dma(1)
    for ks in range(2, 8):
        for i_ in xloads(ks): p.emit(i_)
    issue_dma(2)
    if NT == 2 and opts.get('wo_t', True):
        for i in range(3):
            for half in range(2):
                p.emit(salu(f"s_add_u32 s{sSOFF}, s{sWOB}, {512*i + half*16*1152}", rd=S(sWOB), wr=S(sSOFF)))
                for e in range(4):
                    d = vWOD + i*8 + half*4 + e
                    p.emit(buf_load_u16(d, vWOA, sWO, s(sSOFF), e*1152))

    rp = [0]
    synced = [-1]
    SYNC_LAG = opts.get('sync_lag', 3)
    def sync(n):
        p.wait_tag(('dma', n), lgkm=0)
        p.emit(barrier())
        issue_dma(n + NSTAGE_RING - 1)
        synced[0] = n
    def try_reads(cur_done, maxn):
        k = 0
        while k < maxn and rp[0] < len(FU) and rp[0] - NPOOL <= cur_done:
            d = FU[rp[0]]
            if d['stage'] > synced[0]:
                if rp[0] - cur_done - 1 > SYNC_LAG: return
                sync(d['stage'])
            for i_ in d['reads'](vPOOL + (rp[0] % NPOOL)*4): p.emit(i_)
            rp[0] += 1; k += 1
    try_reads(-1, NPOOL)
    cost = lambda i_: 2 if i_.kind == 'trans' else 1
    for i, d in enumerate(FU):
        for f_ in d['pre']: f_()
        assert rp[0] > i
        ms = d['mf'](vPOOL + (i % NPOOL)*4)
        for mi, m in enumerate(ms):
            p.emit(m)
            last = (mi == len(ms) - 1)
            try_reads(i if last else i - 1, 1)
            if fill:
                if i in deadline:
                    i0, i1, ic = deadline[i]
                    slots_left = (ic - i - 1)*NT + (len(ms) - 1 - mi) + 1
                    tot = sum(cost(x) for x in fill)
                    if i <= i1:
                        tot += NT*(8 + 2 + 4)
                    budget = math.ceil(tot / max(slots_left, 1))
                else:
                    budget = 2
                while fill and budget > 0:
                    x = fill.pop(0); budget -= cost(x); p.emit(x)
        for f_ in d['post']: f_()
    while fill: p.emit(fill.pop(0))
    for n in range(NT):
        l = vL + n; t = vT + n
        p.emit(valu("v_mov_b32", v(t), v(l)))
    for n in range(NT): p.emit(permswap(32, vL+n, vT+n))
    for n in range(NT): p.emit(valu("v_add_f32", v(vL+n), v(vL+n), v(vT+n)))
    for n in range(NT): p.emit(valu("v_mov_b32", v(vT+n), v(vL+n)))
    for n in range(NT): p.emit(permswap(16, vL+n, vT+n))
    for n in range(NT): p.emit(valu("v_add_f32", v(vL+n), v(vL+n), v(vT+n)))
    for n in range(NT): p.emit(valu("v_rcp_f32", v(vL+n), v(vL+n), kind='trans'))
    p.emit(valu("v_lshlrev_b32", v(vDWQ), 4, v(0)))
    for s_ in range(4):
        for n in range(NT):
            a = ACC(2*s_, n); b = ACC(2*s_+1, n); q = QF(s_, n)
            for base in (a, b):
                for i in range(4):
                    p.emit(valu("v_mul_f32", v(base+i), v(base+i), v(vL+n)))
            p.emit(valu("v_cvt_pk_bf16_f32", v(q), v(a), v(a+1)))
            p.emit(valu("v_cvt_pk_bf16_f32", v(q+1), v(a+2), v(a+3)))
            p.emit(valu("v_cvt_pk_bf16_f32", v(q+2), v(b), v(b+1)))
            p.emit(valu("v_cvt_pk_bf16_f32", v(q+3), v(b+2), v(b+3)))
            p.emit(buf_store(q, 4, vDWQ, sO, s(sOR+n), s_*1024))
    if NT == 2 and opts.get('wo_t', True):
        for i in range(3):
            p.emit(salu(f"s_add_u32 s{sSOFF}, s{sWOF}, {2048*1024*i}", rd=S(sWOF), wr=S(sSOFF)))
            for k in range(4):
                p.emit(valu("v_lshl_or_b32", v(vWOD + i*8 + k), v(vWOD + i*8 + 2*k + 1), 16, v(vWOD + i*8 + 2*k)))
            p.emit(buf_store(vWOD + i*8, 4, vDWQ, sWT, s(sSOFF), 0))
    p.emit(Ins("s_endpgm", 'salu'))
    for pb in range(2):
        p.label(f"{name}_rare{pb}")
        p.hist = []; sv = (p.vm, p.lgkm); p.vm = []; p.lgkm = []
        p.nop(12)
        for n in range(NT):
            for i_ in rowmax(n, vT, vT+1): p.emit(i_)
            p.emit(valu("v_max_f32", v(vT), 0, v(vT)))
            p.emit(valu("v_sub_f32", v(vT+1), 0, v(vT)))
            p.emit(valu("v_exp_f32", v(vT+1), v(vT+1), kind='trans'))
            for i in range(4):
                p.emit(valu("v_sub_f32", v(NM(n)+i), v(NM(n)+i), v(vT)))
            for kt in range(2):
                for i in range(4):
                    p.emit(valu("v_sub_f32", v(Sx(kt,n)+i), v(Sx(kt,n)+i), v(vT)))
            p.emit(valu("v_mul_f32", v(vL+n), v(vL+n), v(vT+1)))
            for t in range(8):
                for i in range(4):
                    p.emit(valu("v_mul_f32", v(ACC(t,n)+i), v(ACC(t,n)+i), v(vT+1)))
        for kt in range(2):
            for i_ in exp_list(pb, kt, True): p.emit(i_)
        p.nop(4)
        p.emit(Ins(f"s_setpc_b64 {sr(sRET,2)}", 'salu'))
        p.vm, p.lgkm = sv

def gen_kernel_a(opts=None):
    opts = opts or {}
    p = Prog()
    K = "attn_kernel"
    p.raw(f".globl {K}\n.p2align 8\n.type {K},@function\n{K}:")
    R = p.raw
    R(f"""    s_cmp_ge_u32 s2, 1024
    s_cbranch_scc1 {K}_done
    s_load_dwordx16 s[4:19], s[0:1], 0
    v_lshrrev_b32 v1, 6, v0
    v_and_b32 v0, 63, v0
    s_nop 0
    v_readfirstlane_b32 s60, v1
    s_and_b32 s61, s2, 7                   ; xcd
    s_lshr_b32 s62, s2, 3                  ; j
    s_and_b32 s63, s62, 3
    s_lshl_b32 s61, s61, 2
    s_add_u32 s61, s61, s63                ; b
    s_lshr_b32 s62, s62, 2                 ; h
    s_lshl_b32 s{sW2048}, s60, 11
    s_mov_b32 s{sTHR}, {f32bits(opts.get('thr', 4096.0))}
    s_mov_b32 s{sSCL}, {f32bits(C_SCALE)}
    s_mov_b32 s{sSCL+1}, {f32bits(C_SCALE)}
    s_mul_i32 s64, s60, 3
    s_lshl_b32 s65, s60, 1
    s_add_u32 s65, s65, 2
    s_min_u32 s64, s64, s65
    s_mul_i32 s{sXR}, s64, {16*1152}
    s_add_u32 s{sXR+1}, s{sXR}, {16*1152}
    s_add_u32 s{sXR+2}, s{sXR}, {32*1152}
    s_lshl_b32 s{sOR}, s64, 17
    s_add_u32 s{sOR+1}, s{sOR}, {1<<17}
    s_add_u32 s{sOR+2}, s{sOR}, {2<<17}
    ; DMA: row_in4 = l/16 ; phi = (l/16) | ((w&1)<<2) ; chunk = (l%16) ^ (2*phi)
    v_lshrrev_b32 v22, 4, v0               ; l/16
    s_and_b32 s65, s60, 1
    s_lshl_b32 s65, s65, 2
    v_or_b32 v23, s65, v22                 ; phi
    v_lshlrev_b32 v23, 1, v23
    v_and_b32 v24, 15, v0
    v_xor_b32 v23, v23, v24
    v_lshlrev_b32 v23, 4, v23              ; chunk*16
    s_lshl_b32 s65, s60, 3
    v_add_u32 v25, s65, v22                ; row = 8w + l/16
    v_lshl_add_u32 v{vDKV}, v25, 8, v23
    v_lshl_add_u32 v{vDWQ}, v25, 13, v23
    ; x voffset = (l%16)*1152 + (l/16)*16
    v_mul_u32_u24 v{vXO}, 1152, v24
    v_lshl_add_u32 v{vXO}, v22, 4, v{vXO}
    ; K read addr: m=l%16,g=l/16: row=8*(m/4)+m%4; phi=m%8; addr=row*256+(((2s+g/2)^phi)*32)+(g%2)*16
    v_lshrrev_b32 v25, 2, v24
    v_lshlrev_b32 v25, 3, v25
    v_and_b32 v26, 3, v24
    v_add_u32 v25, v25, v26                ; row
    v_lshlrev_b32 v25, 8, v25
    v_and_b32 v26, 1, v22
    v_lshl_add_u32 v25, v26, 4, v25
    v_lshrrev_b32 v26, 1, v22              ; g/2
    v_and_b32 v27, 7, v24
    v_xor_b32 v26, v26, v27
    v_lshl_add_u32 v{vKA}, v26, 5, v25
    v_xor_b32 v{vKA+1}, 64, v{vKA}
    v_xor_b32 v{vKA+2}, 0x80, v{vKA}
    v_xor_b32 v{vKA+3}, 0xc0, v{vKA}
    ; tr read addr: g=l/16,r=(l/4)%4,c=l%4: row=8g+r; phi=r|((g&1)<<2); addr=row*256+((t^phi)*32)+c*8
    v_bfe_u32 v25, v0, 2, 2                ; r
    v_lshl_add_u32 v26, v22, 3, v25        ; row
    v_lshlrev_b32 v26, 8, v26
    v_and_b32 v27, 3, v0
    v_lshl_add_u32 v26, v27, 3, v26
    v_and_b32 v27, 1, v22
    v_lshl_or_b32 v25, v27, 2, v25         ; phi
    v_lshl_add_u32 v{vTA}, v25, 5, v26""")
    for t in range(1, 8):
        R(f"    v_xor_b32 v{vTA+t}, {t*32}, v{vTA}")
    R(f"""    s_waitcnt lgkmcnt(0)
    ; X srd
    s_mul_i32 s66, s61, 184320
    s_add_u32 s{sX}, s4, s66
    s_addc_u32 s{sX+1}, s5, 0
    s_mov_b32 s{sX+2}, 184320
    s_mov_b32 s{sX+3}, 0x20000
    s_lshl_b32 s66, s61, 5
    s_add_u32 s66, s66, s62
    s_lshl_b32 s66, s66, 17
    s_add_u32 s{sK}, s6, s66
    s_addc_u32 s{sK+1}, s7, 0
    s_mov_b32 s{sK+2}, 131072
    s_mov_b32 s{sK+3}, 0x20000
    s_add_u32 s{sV}, s8, s66
    s_addc_u32 s{sV+1}, s9, 0
    s_mov_b32 s{sV+2}, 131072
    s_mov_b32 s{sV+3}, 0x20000
    s_lshl_b32 s66, s62, 8
    s_add_u32 s{sWQ}, s10, s66
    s_addc_u32 s{sWQ+1}, s11, 0
    s_sub_u32 s{sWQ+2}, {576*8192}, s66
    s_mov_b32 s{sWQ+3}, 0x20000
    s_mul_i32 s66, s61, {10*131072}
    s_lshl_b32 s67, s62, 12
    s_add_u32 s66, s66, s67
    s_add_u32 s{sO}, s18, s66
    s_addc_u32 s{sO+1}, s19, 0
    s_mov_b32 s{sO+2}, {10*131072}
    s_mov_b32 s{sO+3}, 0x20000
    ; Wo transposition helpers (used by NT=2 waves)
    s_mov_b32 s{sWO}, s12
    s_mov_b32 s{sWO+1}, s13
    s_mov_b32 s{sWO+2}, {4096*1152}
    s_mov_b32 s{sWO+3}, 0x20000
    s_add_u32 s{sWT}, s18, {WOFF}
    s_addc_u32 s{sWT+1}, s19, 0
    s_mov_b32 s{sWT+2}, {6144*1024}
    s_mov_b32 s{sWT+3}, 0x20000
    s_lshl_b32 s66, s2, 1
    s_and_b32 s67, s60, 1
    s_add_u32 s66, s66, s67                ; W2
    s_lshl_b32 s{sWOF}, s66, 10
    s_and_b32 s67, s66, 127                ; ks
    s_mul_i32 s67, s67, {32*1152}
    s_lshr_b32 s66, s66, 7                 ; t
    s_lshl_b32 s66, s66, 5
    s_add_u32 s{sWOB}, s66, s67
    s_cmp_ge_u32 s60, 2
    s_cbranch_scc1 {K}_nt2""")
    gen_body(p, 3, K + "_a", opts)
    p.label(f"{K}_nt2")
    p.hist = []; p.vm = []; p.lgkm = []
    R(f"""    v_mul_u32_u24 v{vWOA}, {4*1152}, v22
    v_lshl_add_u32 v{vWOA}, v24, 1, v{vWOA}""")
    gen_body(p, 2, K + "_b", opts)
    p.label(f"{K}_done")
    R("    s_endpgm")
    desc = f""".amdhsa_kernel {K}
  .amdhsa_next_free_vgpr 256
  .amdhsa_next_free_sgpr 96
  .amdhsa_accum_offset 256
  .amdhsa_group_segment_fixed_size 0
  .amdhsa_kernarg_size 64
  .amdhsa_user_sgpr_count 2
  .amdhsa_user_sgpr_kernarg_segment_ptr 1
  .amdhsa_system_sgpr_workgroup_id_x 1
.end_amdhsa_kernel"""
    return p, desc, f"; @launch kernel={K} grid=(1024,1,1) block=(256,1,1) lds={NSTAGE_RING*16384}"
```

```python
from asmlib import *
WOFF = 48 << 20
DEPTH = 4
def gen_kernel_b(opts=None):
    opts = opts or {}
    p = Prog()
    K = "oproj_kernel"
    p.raw(f".globl {K}\n.p2align 8\n.type {K},@function\n{K}:")
    R = p.raw
    sO, sW, sD = 20, 24, 28
    sOR = 32
    sWT = 40
    sQ = 50
    vOFF, vST, vRD = 1, 2, 3
    vWR = 4
    BUF = 8
    OB = lambda d, r: BUF + (d*14 + r)*4
    WB = lambda d, t: BUF + (d*14 + 5 + t)*4
    AC = lambda t, r: (t*5 + r)*4
    R(f"""    s_cmp_ge_u32 s2, 256
    s_cbranch_scc1 {K}_done
    s_load_dwordx4 s[4:7], s[0:1], 40
    s_load_dwordx2 s[8:9], s[0:1], 56
    v_lshrrev_b32 v1, 6, v0
    v_and_b32 v0, 63, v0
    s_nop 0
    v_readfirstlane_b32 s60, v1
    s_and_b32 s61, s2, 7                   ; xcd
    s_lshr_b32 s62, s2, 3                  ; j
    s_and_b32 s63, s62, 3                  ; Ntile
    s_lshr_b32 s62, s62, 2
    s_lshl_b32 s61, s61, 3
    s_add_u32 s61, s61, s62                ; Mtile
    s_lshl_b32 s64, s60, 15
    s_mov_b32 s{sOR}, s64""")
    for r in range(1, 5):
        R(f"    s_add_u32 s{sOR+r}, s64, {r<<17}")
    for tt in range(8):
        R(f"""    s_lshl_b32 s65, s60, 1
    s_add_u32 s65, s65, {tt}
    s_and_b32 s65, s65, 7
    s_lshl_b32 s65, s65, 17
    s_add_u32 s{sWT+tt}, s65, s64""")
    R(f"    s_add_u32 s{sWT+8}, s64, {8<<17}")
    for r in range(5):
        R(f"    s_mov_b32 s{sQ+r}, {r*16*1152}")
    R(f"""    v_lshlrev_b32 v{vOFF}, 4, v0
    v_and_b32 v8, 15, v0
    v_lshrrev_b32 v9, 4, v0
    v_mul_u32_u24 v{vST}, 1152, v8
    v_lshl_add_u32 v10, v9, 3, v{vST}      ; singles: q*1152 + g*8
    v_lshl_add_u32 v{vST}, v9, 4, v{vST}
    s_lshl_b32 s65, s60, 6
    v_add_u32 v{vST}, s65, v{vST}
    s_mul_i32 s65, s60, 30720
    v_add_u32 v{vRD}, s65, v{vOFF}""")
    for pp in range(1, 4):
        R(f"""    s_add_u32 s65, s60, {pp}
    s_and_b32 s65, s65, 3
    s_mul_i32 s65, s65, 30720
    s_add_u32 s65, s65, {(3-pp)*10240}
    v_add_u32 v{vWR+pp-1}, s65, v{vOFF}""")
    R(f"""    s_mul_i32 s65, s60, 5120
    s_add_u32 s65, s65, 122880
    v_add_u32 v{vWR+3}, s65, v{vOFF}
    v_mov_b32 v232, v10
    s_lshl_b32 s65, s60, 10
    s_add_u32 s65, s65, 122880
    v_add_u32 v233, s65, v{vOFF}
    s_mul_i32 s66, s60, {16*1152}
    s_waitcnt lgkmcnt(0)
    s_mul_i32 s65, s61, {5<<17}
    s_add_u32 s{sO}, s8, s65
    s_addc_u32 s{sO+1}, s9, 0
    s_mov_b32 s{sO+2}, {5<<17}
    s_mov_b32 s{sO+3}, 0x20000
    s_mul_i32 s65, s63, {9<<17}
    s_add_u32 s65, s65, {WOFF}
    s_add_u32 s{sW}, s8, s65
    s_addc_u32 s{sW+1}, s9, 0
    s_mov_b32 s{sW+2}, {9<<17}
    s_mov_b32 s{sW+3}, 0x20000
    s_mul_i32 s65, s61, {80*1152}
    s_mul_i32 s67, s63, 288
    s_add_u32 s65, s65, s67
    s_add_u32 s{sD}, s4, s65
    s_addc_u32 s{sD+1}, s5, 0
    s_mov_b32 s{sD+2}, {79*1152+288}
    s_mov_b32 s{sD+3}, 0x20000""")
    NK = 32
    vOFF2 = 234
    vo = lambda ks: (vOFF if (ks//4) % 2 == 0 else vOFF2)
    def ldO(ks, r): return buf_load4(OB(ks % DEPTH, r), vo(ks), sO, s(sOR+r), (ks % 4)*1024)
    def ldW(ks, t): return buf_load4(WB(ks % DEPTH, t), vo(ks), sW, s(sWT+t), (ks % 4)*1024)
    for ks in range(DEPTH):
        for r in range(5): p.emit(ldO(ks, r))
        for t in range(9): p.emit(ldW(ks, t))
    for ks in range(NK):
        nk = ks + DEPTH
        if nk < NK and nk % 4 == 0:
            p.emit(valu("v_add_u32", v(vo(nk)), 4096, v(vo(nk-4))))
        for t in range(9):
            for r in range(5):
                p.emit(mfma16a(AC(t, r), WB(ks % DEPTH, t), OB(ks % DEPTH, r), zero=(ks == 0)))
                if nk < NK and t == 8: p.emit(ldO(nk, r))
            if nk < NK and t < 8: p.emit(ldW(nk, t))
        if nk < NK: p.emit(ldW(nk, 8))
    for pp in range(1, 4):
        for h in range(2):
            for r in range(5):
                p.emit(ds_write_b128a(vWR+pp-1, AC(2*pp+h, r), (h*5+r)*1024))
    for r in range(5):
        p.emit(ds_write_b128a(vWR+3, AC(8, r), r*1024))
    OWN = 8
    PART = 48
    SG = 168
    for i in range(40): p.emit(accread(OWN+i, i))
    p.wait(lgkm=0)
    p.emit(barrier())
    def single(base, rdoff, addr, soff):
        for w in range(4):
            p.emit(ds_read_b128(base+4*w, addr, rdoff + w*5120))
        return
    def single_fin(base, soff):
        for i in range(0, 4, 2):
            for (x, y) in ((0, 4), (8, 12), (0, 8)):
                p.emit(Ins(f"v_pk_add_f32 {vr(base+x+i,2)}, {vr(base+x+i,2)}, {vr(base+y+i,2)}", 'valu',
                           rd=V(base+x+i,2)+V(base+y+i,2), wr=V(base+x+i,2)))
        p.emit(valu("v_cvt_pk_bf16_f32", v(base), v(base), v(base+1)))
        p.emit(valu("v_cvt_pk_bf16_f32", v(base+1), v(base+2), v(base+3)))
        p.emit(buf_store(base, 2, 232, sD, soff, 256))
    for r in range(5):
        for h in range(2):
            for sidx in range(3):
                p.emit(ds_read_b128(PART + ((r*2+h)*3+sidx)*4, vRD, sidx*10240 + (h*5+r)*1024))
        if r == 1: single(SG, 0, 233, None)
    for r in range(5):
        for h in range(2):
            o = OWN + (h*5+r)*4
            for sidx in range(3):
                q = PART + ((r*2+h)*3+sidx)*4
                for i in (0, 2):
                    p.emit(Ins(f"v_pk_add_f32 {vr(o+i,2)}, {vr(o+i,2)}, {vr(q+i,2)}", 'valu',
                               rd=V(o+i,2)+V(q+i,2), wr=V(o+i,2)))
        a = OWN + r*4; b = OWN + (5+r)*4; q = 200 + r*4
        p.emit(valu("v_cvt_pk_bf16_f32", v(q), v(a), v(a+1)))
        p.emit(valu("v_cvt_pk_bf16_f32", v(q+1), v(a+2), v(a+3)))
        p.emit(valu("v_cvt_pk_bf16_f32", v(q+2), v(b), v(b+1)))
        p.emit(valu("v_cvt_pk_bf16_f32", v(q+3), v(b+2), v(b+3)))
        p.emit(permswap(32, q, q+2)); p.emit(permswap(32, q+1, q+3))
        p.emit(permswap(16, q, q+2)); p.emit(permswap(16, q+1, q+3))
        p.emit(buf_store(q, 4, vST, sD, s(sQ+r), 0))
        if r == 1: single_fin(SG, s(66))
    p.raw(f"    s_cmp_lg_u32 s60, 0\n    s_cbranch_scc1 {K}_done")
    single(SG+16, 4096, 233, None)
    single_fin(SG+16, s(sQ+4))
    p.label(f"{K}_done")
    R("    s_endpgm")
    desc = f""".amdhsa_kernel {K}
  .amdhsa_next_free_vgpr 512
  .amdhsa_next_free_sgpr 96
  .amdhsa_accum_offset 256
  .amdhsa_group_segment_fixed_size 0
  .amdhsa_kernarg_size 64
  .amdhsa_user_sgpr_count 2
  .amdhsa_user_sgpr_kernarg_segment_ptr 1
  .amdhsa_system_sgpr_workgroup_id_x 1
.end_amdhsa_kernel"""
    return p, desc, f"; @launch kernel={K} grid=(256,1,1) block=(256,1,1) lds=143360"
```

```python
import sys, os, json
sys.path.insert(0, os.path.dirname(__file__))
from kern_a import gen_kernel_a
from kern_b import gen_kernel_b
from kern_q import gen_kernel_q
from kern_m import gen_kernel_b2
REF = 'standalone__mha_block_cached__near_ridge.s.ref'
def build(out, opts=None):
    opts = opts or {}
    head = []
    for l in open(REF):
        if l.startswith('; @launch'): break
        head.append(l.rstrip('\n'))
    ks = [gen_kernel_a(opts), gen_kernel_b(opts)]
    if opts.get('b2'): ks[1] = gen_kernel_b2(opts)
    if opts.get('merge'): ks = ks[:1]
    if opts.get('split'): ks = [gen_kernel_q(opts)] + ks
    L = head + [k[2] for k in ks]
    L.append('.amdgcn_target "amdgcn-amd-amdhsa--gfx950"')
    L.append('.text')
    for k in ks: L += k[0].out
    L.append('.section .rodata,"a"')
    for k in ks:
        L.append('.p2align 6'); L.append(k[1])
    open(out, 'w').write('\n'.join(L) + '\n')
    for k in ks: print(k[2], k[0].nins, k[0].stats)
if __name__ == '__main__':
    out = sys.argv[1] if len(sys.argv) > 1 else 'standalone__mha_block_cached__near_ridge.s'
    opts = json.loads(sys.argv[2]) if len(sys.argv) > 2 else {}
    build(out, opts)
```

```python
from asmlib import *
import math

NSTAGE_RING = 4
C_SCALE = math.log2(math.e) / math.sqrt(128.0)
import struct
def f32bits(x): return "0x%08x" % struct.unpack('<I', struct.pack('<f', x))[0]

sX, sK, sV, sWQ, sO = 20, 24, 28, 32, 36
sSOFF = 40; sW2048 = 41; sTHR = 42; sSCL = 44
sXR = 46
sOR = 50
sRET = 54
sWO = 68; sWT = 72; sWOB = 76; sWOF = 77
vWOD = 92; vWOA = 116; vDKV1 = 117; vDWQ1 = 118; sSOF2 = 78; sWID4 = 79
WOFF = 48 << 20
vDKV, vDWQ, vXO = 1, 2, 3
vKA = 4; vTA = 8; vL = 16; vXP = 16; vT = 22
vLSAFE = [0, 2, 3]
sMODE = 43; sTLO = 49
vACC = 28; vQF = 124; vS = 172; vP = 196; vM = 220; vPOOL = 224
NPOOL = 8

SPLIT = [0]
QOFF = 64 << 20
def tiles_of_stage(n):
    if SPLIT[0]: n += 9
    if n <= 8: return [('W', 2*n), ('W', 2*n+1)]
    if n == 9: return [('K', 0), ('K', 1)]
    if n <= 23: return [('V', n-10), ('K', n-8)]
    return [('V', 14), ('V', 15)]

def gen_body(p, NT, name, opts):
    SP = SPLIT[0]; NST = 16 if SP else 25
    if opts.get('nocompute'):
        oe = Prog.emit
        def em(ins, p=p):
            if ins.kind in ('mfma', 'ds', 'trans', 'perm') or (ins.kind == 'valu' and 'vcc' not in ins.text and 'lshl' not in ins.text): return
            oe(p, ins)
        p.emit = em
    ACC = lambda t, n: vACC + (t*NT + n)*4
    QF = lambda s_, n: vQF + (s_*NT + n)*4
    Sx = lambda kt, n: vS + (kt*NT + n)*4
    Px = lambda pb, n: vP + (pb*NT + n)*4
    NM = lambda n: vNM + n*4
    XR = lambda ks, n: vQF + ((ks % 6)*NT + n)*4
    XF = lambda ks, n: 196 + ((ks % 2)*NT + n)*4
    LP = lambda n: vL + 2*n
    def pkadd(d, a, b):
        return Ins(f"v_pk_add_f32 {vr(d,2)}, {vr(a,2)}, {vr(b,2)}", 'valu', rd=V(a,2)+V(b,2), wr=V(d,2))
    def xshuf(ks):
        if ks >= 18: return []
        return [Ins(f"ds_bpermute_b32 v{XF(ks,n)+i}, v{vXP}, v{XR(ks,n)+i}", 'ds', rd=V(vXP)+V(XR(ks,n)+i), wr=V(XF(ks,n)+i))
                for n in range(NT) for i in range(4)]
    kvflags = opts.get('kvflags', '')

    DM2 = opts.get('dma2', 1)
    def dma_units(n):
        U = []
        if n >= NST or opts.get('nodma'): return U
        if DM2 and NT == 3: return U
        for ti, (kind, idx) in enumerate(tiles_of_stage(n)):
            slot = (n % NSTAGE_RING)*16384 + ti*8192
            npc = 4 if DM2 else 2
            for i in range(npc):
                u = []
                if i == 0: u.append(salu(f"s_add_u32 m0, s{sW2048}, {slot}", rd=S(sW2048), wr=[('s','m0')]))
                vsel = (i >> 1) if DM2 else 0
                if kind == 'W':
                    u.append(salu(f"s_mov_b32 s{sSOFF}, {idx*32*8192 + i*(4*8192 - 1024)}", wr=S(sSOFF)))
                    u.append(buf_dma4((vDWQ, vDWQ1)[vsel], sWQ, s(sSOFF), i*1024, tag=('dma', n)))
                else:
                    srd = sK if kind == 'K' else sV
                    if i == 0: u.append(salu(f"s_mov_b32 s{sSOFF}, {idx*8192}", wr=S(sSOFF)))
                    u.append(buf_dma4((vDKV, vDKV1)[vsel], srd, s(sSOFF), i*1024, tag=('dma', n), flags=kvflags))
                U.append(u)
        return U
    dq = []
    def issue_dma(n, spread=False):
        while dq:
            for i_ in dq.pop(0): p.emit(i_)
        if spread and opts.get('spread', 1): dq.extend(dma_units(n))
        else:
            for u in dma_units(n):
                for i_ in u: p.emit(i_)
    def xloads(ks):
        if ks >= 18 or opts.get('nox'): return []
        return [buf_load4(XR(k_, n), vXO, sX, s(sXR+n), k_*64) for n in range(NT) for k_ in (ks, ks+1)]

    def exp_list(pb, kt, first_in_tile):
        pairs = []
        for n in range(NT):
            for hp in range(2):
                pairs.append((n, hp))
        e = []; post = []
        res = []
        for i, (n, hp) in enumerate(pairs):
            ta = vT + ((i + kt*len(pairs)) % 3)*2; tb = ta + 1
            src = Sx(kt, n) + 2*hp
            ex = [valu("v_exp_f32", v(ta), v(src), kind='trans'), valu("v_exp_f32", v(tb), v(src+1), kind='trans')]
            po = [valu("v_cvt_pk_bf16_f32", v(Px(pb, n) + 2*kt + hp), v(ta), v(tb))]
            if opts.get('pkadd'): po.append(pkadd(LP(n), LP(n), ta))
            else:
                po.append(valu("v_add_f32", v(LP(n)), v(LP(n)), v(ta)))
                po.append(valu("v_add_f32", v(LP(n)+1), v(LP(n)+1), v(tb)))
            res += ex
            res += post
            post = po
        res += post
        return res
    def rowmax(n, d, t):
        a = Sx(0, n); b = Sx(1, n)
        L = [valu("v_max3_f32", v(d), v(a), v(a+1), v(a+2)),
             valu("v_max3_f32", v(t), v(a+3), v(b), v(b+1)),
             valu("v_max3_f32", v(d), v(d), v(b+2), v(b+3)),
             valu("v_max_f32", v(d), v(d), v(t)),
             valu("v_mov_b32", v(t), v(d)),
             permswap(32, d, t),
             valu("v_max_f32", v(d), v(d), v(t)),
             valu("v_mov_b32", v(t), v(d)),
             permswap(16, d, t),
             valu("v_max_f32", v(d), v(d), v(t))]
        return L
    fill = []
    site = [0]
    def check(pb):
        while fill: p.emit(fill.pop(0))
        lab = f"{name}_skip{site[0]}"; site[0] += 1
        p.emit(salu(f"s_cmp_eq_u32 s{sMODE}, 0", rd=S(sMODE)))
        p.emit(Ins(f"s_cbranch_scc1 {lab}", 'salu', rd=[]))
        p.emit(Ins(f"s_call_b64 {sr(sRET,2)}, {name}_rare{pb}", 'salu'))
        p.label(lab)

    def init_sm():
        for n in range(NT):
            p.emit(valu("v_mov_b32", v(LP(n)), 0)); p.emit(valu("v_mov_b32", v(LP(n)+1), 0))
            p.emit(valu("v_mov_b32", v(vLSAFE[n]), 0)); p.emit(valu("v_mov_b32", v(vM+n), "0xff7fffff"))

    def q_convert():
        for s_ in range(4):
            for n in range(NT):
                a = ACC(2*s_, n); b = ACC(2*s_+1, n)
                for base in (a, b):
                    for i in (0, 2):
                        p.emit(Ins(f"v_pk_mul_f32 {vr(base+i,2)}, {vr(base+i,2)}, {sr(sSCL,2)}", 'valu',
                                   rd=V(base+i,2)+S(sSCL,2), wr=V(base+i,2)))
            for n in range(NT):
                a = ACC(2*s_, n); b = ACC(2*s_+1, n); q = QF(s_, n)
                p.emit(valu("v_cvt_pk_bf16_f32", v(q), v(a), v(a+1)))
                p.emit(valu("v_cvt_pk_bf16_f32", v(q+1), v(a+2), v(a+3)))
                p.emit(valu("v_cvt_pk_bf16_f32", v(q+2), v(b), v(b+1)))
                p.emit(valu("v_cvt_pk_bf16_f32", v(q+3), v(b+2), v(b+3)))
            for n in range(NT):
                q = QF(s_, n)
                p.emit(permswap(32, q, q+2)); p.emit(permswap(32, q+1, q+3))
            for n in range(NT):
                q = QF(s_, n)
                p.emit(permswap(16, q, q+2)); p.emit(permswap(16, q+1, q+3))

    FU = []
    for n in range(NST):
        for ti, (kind, idx) in enumerate(tiles_of_stage(n)):
            slot = (n % NSTAGE_RING)*16384 + ti*8192
            for f in range(8):
                d = dict(stage=n, kind=kind, idx=idx, f=f, pre=[], post=[])
                if kind in 'WV':
                    t = f
                    d['reads'] = (lambda r, t=t, slot=slot: [ds_read_tr(r, vTA+t, slot), ds_read_tr(r+2, vTA+t, slot+1024)])
                    if kind == 'W':
                        d['mf'] = (lambda r, t=t, idx=idx: [mfma16(ACC(t,n_), r, XF(idx,n_), None if idx == 0 else ACC(t,n_)) for n_ in range(NT)])
                    else:
                        d['mf'] = (lambda r, t=t, idx=idx: [mfma16(ACC(t,n_), r, Px(idx%2,n_), None if idx == 0 else ACC(t,n_)) for n_ in range(NT)])
                else:
                    kt, s_ = f // 4, f % 4
                    d['reads'] = (lambda r, kt=kt, s_=s_, slot=slot: [ds_read_b128(r, vKA+s_, slot+kt*1024)])
                    def mf(r, kt=kt, s_=s_, idx=idx):
                        return [mfma16(Sx(kt,n_), r, QF(s_,n_), None if s_ == 0 else Sx(kt,n_)) for n_ in range(NT)]
                    d['mf'] = mf
                FU.append(d)
    def find(kind, idx, f):
        for i, d in enumerate(FU):
            if d['kind'] == kind and d['idx'] == idx and d['f'] == f: return i
        raise KeyError
    for ks in range(0 if SP else 18):
        FU[find('W', ks, 0)]['post'].append(lambda ks=ks: fill.extend(xshuf(ks+1) + (xloads(ks+6) if ks % 2 == 0 else [])))
    def stamp(sreg):
        if opts.get('diag'):
            p.wait(lgkm=0)
            p.raw(f"    s_memrealtime s[{sreg}:{sreg+1}]\n    s_waitcnt lgkmcnt(0)")
    FU[find('K', 0, 0)]['pre'].append(lambda: stamp(82))
    FU[1]['pre'].append(lambda: stamp(86))
    if not SP: FU[find('K', 0, 0)]['pre'].append(q_convert)
    FU[find('K', 0, 0)]['pre'].append(init_sm)
    if opts.get('prio_att') is not None:
        FU[find('K', 0, 0)]['pre'].append(lambda: p.emit(salu(f"s_setprio {opts['prio_att']}")))
        FU[0]['pre'].append(lambda: p.emit(salu(f"s_setprio {opts['prio_q']}")))
    deadline = {}
    for j in range(0, 16):
        i0 = find('K', j, 4)
        FU[i0]['post'].append(lambda j=j: fill.extend(exp_list(j%2, 0, True)))
        i1 = find('K', j, 7) + 1
        FU[i1]['post' if j else 'pre'].append(lambda j=j: fill.extend(exp_list(j%2, 1, False)))
        ic = find('K', j+1, 0) if j < 15 else find('V', 15, 0)
        FU[ic]['pre'].append(lambda j=j: check(j%2))
        for i in range(i0, ic): deadline[i] = (i0, i1, ic)

    if opts.get('nox'):
        for r_ in range(124, 220): p.raw(f"    v_mov_b32 v{r_}, 0")
    if SP:
        issue_dma(0)
        for s_ in range(4):
            for n in range(NT): p.emit(buf_load4(QF(s_, n), vXO, sX, s(sXR+n), s_*1024))
        for n_ in range(1, NSTAGE_RING-1): issue_dma(n_)
    else:
        issue_dma(0)
        for i_ in xloads(0): p.emit(i_)
        issue_dma(1)
        for i_ in xloads(2): p.emit(i_)
        issue_dma(2)
        for i_ in xloads(4): p.emit(i_)
        for i_ in xshuf(0): p.emit(i_)
    def wo_loads():
        for i in range(3):
            for half in range(2):
                p.emit(salu(f"s_add_u32 s{sSOF2}, s{sWOB}, {512*i + half*16*1152}", rd=S(sWOB), wr=S(sSOF2)))
                for e in range(4):
                    d = vWOD + i*8 + half*4 + e
                    p.emit(buf_load_u16(d, vWOA, sWO, s(sSOF2), e*1152))

    if NT == 2 and opts.get('wo_t', True):
        FU[find('V', 2, 0)]['pre'].append(wo_loads)
    rp = [0]
    synced = [-1]
    SYNC_LAG = opts.get('sync_lag', 3)
    def sync(n):
        while dq:
            for i_ in dq.pop(0): p.emit(i_)
        p.wait_tag(('dma', n), lgkm=0)
        if not opts.get('nobar'): p.emit(barrier())
        issue_dma(n + NSTAGE_RING - 1, True)
        synced[0] = n
    def try_reads(cur_done, maxn):
        k = 0
        while k < maxn and rp[0] < len(FU) and rp[0] - NPOOL <= cur_done:
            d = FU[rp[0]]
            if d['stage'] > synced[0]:
                if rp[0] - cur_done - 1 > SYNC_LAG: return
                sync(d['stage'])
            for i_ in d['reads'](vPOOL + (rp[0] % NPOOL)*4): p.emit(i_)
            rp[0] += 1; k += 1
    try_reads(-1, NPOOL)
    mcount = [0]
    cost = lambda i_: 2 if i_.kind == 'trans' else 1
    for i, d in enumerate(FU):
        for f_ in d['pre']: f_()
        assert rp[0] > i
        ms = d['mf'](vPOOL + (i % NPOOL)*4)
        for mi, m in enumerate(ms):
            p.emit(m)
            last = (mi == len(ms) - 1)
            try_reads(i if last else i - 1, 1)
            mcount[0] += 1
            if dq and mcount[0] % opts.get('dmagap', 3) == 0:
                for i_ in dq.pop(0): p.emit(i_)
            if fill:
                if i in deadline:
                    i0, i1, ic = deadline[i]
                    slots_left = (ic - i - 1)*NT + (len(ms) - 1 - mi) + 1
                    tot = sum(cost(x) for x in fill)
                    if i <= i1:
                        tot += NT*(8 + 2 + 4)
                    budget = math.ceil(tot / max(slots_left, 1))
                else:
                    budget = 1
                while fill and budget > 0:
                    x = fill.pop(0); budget -= cost(x); p.emit(x)
        for f_ in d['post']: f_()
    while fill: p.emit(fill.pop(0))
    if opts.get('nocompute'): del p.emit
    for n in range(NT): p.emit(valu("v_add_f32", v(LP(n)), v(LP(n)), v(LP(n)+1)))
    for n in range(NT): p.emit(valu("v_mov_b32", v(vT+n), v(LP(n))))
    for n in range(NT): p.emit(permswap(32, LP(n), vT+n))
    for n in range(NT): p.emit(valu("v_add_f32", v(LP(n)), v(LP(n)), v(vT+n)))
    for n in range(NT): p.emit(valu("v_mov_b32", v(vT+n), v(LP(n))))
    for n in range(NT): p.emit(permswap(16, LP(n), vT+n))
    for n in range(NT): p.emit(valu("v_add_f32", v(LP(n)), v(LP(n)), v(vT+n)))
    p.emit(valu("v_add_f32", v(vT), v(LP(0)), v(LP(1))))
    if NT == 3: p.emit(valu("v_add_f32", v(vT), v(vT), v(LP(2))))
    if NT == 3: p.emit(valu("v_min3_f32", v(vT+1), v(LP(0)), v(LP(1)), v(LP(2))))
    else: p.emit(valu("v_min_f32", v(vT+1), v(LP(0)), v(LP(1))))
    p.emit(Ins(f"v_cmp_nge_f32 vcc, s{sTHR}, v{vT}", 'valu', rd=V(vT)+S(sTHR), wr=[('s','vcc')]))
    p.emit(Ins(f"v_cmp_nle_f32 s[{sRET}:{sRET+1}], s{sTLO}, v{vT+1}", 'valu', rd=V(vT+1)+S(sTLO), wr=S(sRET,2)))
    p.nop(2)
    p.emit(salu(f"s_or_b64 vcc, vcc, s[{sRET}:{sRET+1}]"))
    p.emit(Ins(f"v_mov_b32 v{vT+2}, s{sWID4}", 'valu', rd=S(sWID4), wr=V(vT+2)))
    p.emit(Ins(f"v_mov_b32 v{vT+3}, 0", 'valu', wr=V(vT+3)))
    p.nop(2)
    p.emit(salu(f"s_cmp_lg_u64 vcc, 0"))
    p.emit(salu(f"s_cselect_b32 s{sSOFF}, 1, 0", wr=S(sSOFF)))
    p.emit(Ins(f"v_mov_b32 v{vT+1}, s{sSOFF}", 'valu', rd=S(sSOFF), wr=V(vT+1)))
    FLG = ((NST-2) % NSTAGE_RING)*16384
    p.emit(Ins(f"ds_write_b32 v{vT+2}, v{vT+1} offset:{FLG}", 'ds', rd=V(vT+1)+V(vT+2)))
    for n in range(NT): p.emit(valu("v_rcp_f32", v(LP(n)), v(LP(n)), kind='trans'))
    p.emit(Ins(f"v_mbcnt_lo_u32_b32 v{vDKV}, -1, 0", 'valu', wr=V(vDKV)))
    p.emit(Ins(f"v_mbcnt_hi_u32_b32 v{vDKV}, -1, v{vDKV}", 'valu', rd=V(vDKV), wr=V(vDKV)))
    p.wait(lgkm=0)
    p.emit(barrier())
    p.emit(ds_read_b128(vPOOL, vT+3, FLG))
    p.emit(valu("v_mov_b32", v(0), v(vDKV)))
    p.emit(valu("v_lshlrev_b32", v(vDWQ), 4, v(vDKV)))
    p.emit(valu("v_or3_b32", v(vPOOL), v(vPOOL), v(vPOOL+1), v(vPOOL+2)))
    p.emit(valu("v_or_b32", v(vPOOL), v(vPOOL), v(vPOOL+3)))
    p.emit(Ins(f"v_readfirstlane_b32 s{sSOFF}, v{vPOOL}", 'valu', rd=V(vPOOL), wr=S(sSOFF)))
    p.nop(2)
    p.emit(salu(f"s_andn2_b32 s{sSOFF}, s{sSOFF}, s{sMODE}", rd=S(sSOFF)+S(sMODE), wr=S(sSOFF)))
    if opts.get('nocompute') or opts.get('nodma') or opts.get('nox'): p.emit(salu(f"s_branch {name}_fin"))
    p.emit(salu(f"s_cbranch_scc0 {name}_fin"))
    p.raw(f"    s_mov_b32 s{sMODE}, 1\n    s_waitcnt vmcnt(0) lgkmcnt(0)\n    s_branch attn_kernel_restart")
    p.label(f"{name}_fin")
    for s_ in range(4):
        for n in range(NT):
            a = ACC(2*s_, n); b = ACC(2*s_+1, n); q = QF(s_, n)
            for base in (a, b):
                for i in range(4):
                    p.emit(valu("v_mul_f32", v(base+i), v(base+i), v(LP(n))))
            p.emit(valu("v_cvt_pk_bf16_f32", v(q), v(a), v(a+1)))
            p.emit(valu("v_cvt_pk_bf16_f32", v(q+1), v(a+2), v(a+3)))
            p.emit(valu("v_cvt_pk_bf16_f32", v(q+2), v(b), v(b+1)))
            p.emit(valu("v_cvt_pk_bf16_f32", v(q+3), v(b+2), v(b+3)))
            p.emit(buf_store(q, 4, vDWQ, sO, s(sOR+n), s_*1024, flags=opts.get('oflags', '')))
    if NT == 2 and opts.get('wo_t', True):
        for i in range(3):
            p.emit(salu(f"s_add_u32 s{sSOFF}, s{sWOF}, {2048*1024*i}", rd=S(sWOF), wr=S(sSOFF)))
            for k in range(4):
                p.emit(valu("v_lshl_or_b32", v(vWOD + i*8 + k), v(vWOD + i*8 + 2*k + 1), 16, v(vWOD + i*8 + 2*k)))
            p.emit(buf_store(vWOD + i*8, 4, vDWQ, sWT, s(sSOFF), 0))
    if opts.get('diag'):
        stamp(84)
        p.raw(f"""    s_waitcnt vmcnt(0)
    s_getreg_b32 s88, hwreg(HW_REG_HW_ID)
    s_getreg_b32 s89, hwreg(HW_REG_XCC_ID)
    v_mov_b32 v28, s80
    v_mov_b32 v29, s82
    v_mov_b32 v30, s84
    v_mov_b32 v31, s88
    v_mov_b32 v32, s89
    v_mov_b32 v33, s86
    v_mov_b32 v34, 0
    v_mov_b32 v35, 0
    s_lshl_b32 s88, s2, 2
    s_add_u32 s88, s88, s60
    s_lshl_b32 s88, s88, 5
    s_add_u32 s88, s88, {8<<20}
    s_mov_b32 s{sWT+2}, {16<<20}
    v_mov_b32 v36, 0
    s_nop 4
    buffer_store_dwordx4 v[28:31], v36, s[{sWT}:{sWT+3}], s88 offen
    buffer_store_dwordx4 v[32:35], v36, s[{sWT}:{sWT+3}], s88 offen offset:16""")
    p.emit(Ins("s_endpgm", 'salu'))
    for pb in range(2):
        p.label(f"{name}_rare{pb}")
        p.hist = []; sv = (p.vm, p.lgkm); p.vm = []; p.lgkm = []
        p.nop(12)
        for n in range(NT):
            for i_ in rowmax(n, vT, vT+1): p.emit(i_)
            p.emit(valu("v_max_f32", v(vT), v(vM+n), v(vT)))
            p.emit(valu("v_sub_f32", v(vT+1), v(vM+n), v(vT)))
            p.emit(valu("v_exp_f32", v(vT+1), v(vT+1), kind='trans'))
            p.emit(valu("v_mov_b32", v(vM+n), v(vT)))
            for kt in range(2):
                for i in range(4):
                    p.emit(valu("v_sub_f32", v(Sx(kt,n)+i), v(Sx(kt,n)+i), v(vT)))
            p.emit(valu("v_mul_f32", v(LP(n)), v(vLSAFE[n]), v(vT+1)))
            p.emit(valu("v_mov_b32", v(LP(n)+1), 0))
            for t in range(8):
                for i in range(4):
                    p.emit(valu("v_mul_f32", v(ACC(t,n)+i), v(ACC(t,n)+i), v(vT+1)))
        for kt in range(2):
            for i_ in exp_list(pb, kt, True): p.emit(i_)
        for n in range(NT):
            p.emit(valu("v_add_f32", v(vLSAFE[n]), v(LP(n)), v(LP(n)+1)))
        p.nop(4)
        p.emit(Ins(f"s_setpc_b64 {sr(sRET,2)}", 'salu'))
        p.vm, p.lgkm = sv

def gen_kernel_a(opts=None):
    opts = opts or {}
    SPLIT[0] = opts.get('split', 0)
    p = Prog()
    K = "attn_kernel"
    p.raw(f".globl {K}\n.p2align 8\n.type {K},@function\n{K}:")
    R = p.raw
    R(f"""    s_cmp_ge_u32 s2, 1024
    s_cbranch_scc1 {K}_done
    s_load_dwordx16 s[4:19], s[0:1], 0
    {'s_memrealtime s[80:81]' if opts.get('diag') else ''}
    v_lshrrev_b32 v1, 6, v0
    v_and_b32 v0, 63, v0
    s_getreg_b32 s61, hwreg(HW_REG_HW_ID)
    v_readfirstlane_b32 s60, v1
    s_mov_b32 s{sMODE}, {opts.get('mode0', 0)}
    s_bfe_u32 s62, s61, 0x20004
    s_and_b32 s61, s61, 1
    s_lshl_b32 s61, s61, 1
    s_xor_b32 s62, s62, s61
    s_lshl_b32 s63, 1, s62
    v_mov_b32 v2, s63
    v_lshlrev_b32 v1, 2, v1
    v_mov_b32 v3, 0
    ds_write_b32 v1, v2 offset:{3*16384}
    s_waitcnt lgkmcnt(0)
    s_barrier
    ds_read_b128 v[4:7], v3 offset:{3*16384}
    s_waitcnt lgkmcnt(0)
    v_or3_b32 v4, v4, v5, v6
    v_or_b32 v4, v4, v7
    s_nop 0
    v_readfirstlane_b32 s63, v4
    s_nop 1
    s_cmp_eq_u32 s63, 15
    {'s_cselect_b32 s60, s62, s60' if opts.get('roles', 1) else ''}
{K}_restart:
    s_and_b32 s61, s2, 7                   ; xcd
    s_lshr_b32 s62, s2, 3                  ; j
    s_and_b32 s63, s62, 3
    s_lshl_b32 s61, s61, 2
    s_add_u32 s61, s61, s63                ; b
    s_lshr_b32 s62, s62, 2                 ; h
    s_lshl_b32 s{sW2048}, s60, 11
    s_lshl_b32 s{sWID4}, s60, 2
    s_mov_b32 s{sTHR}, {f32bits(2.0**40)}
    s_mov_b32 s{sTLO}, {f32bits(2.0**-40)}
    s_mov_b32 s{sSCL}, {f32bits(C_SCALE)}
    s_mov_b32 s{sSCL+1}, {f32bits(C_SCALE)}
    s_mul_i32 s64, s60, 3
    s_lshl_b32 s65, s60, 1
    s_add_u32 s65, s65, 2
    s_min_u32 s64, s64, s65
    s_mul_i32 s{sXR}, s64, {16*1152}
    s_add_u32 s{sXR+1}, s{sXR}, {16*1152}
    s_add_u32 s{sXR+2}, s{sXR}, {32*1152}
    s_lshl_b32 s{sOR}, s64, 17
    s_add_u32 s{sOR+1}, s{sOR}, {1<<17}
    s_add_u32 s{sOR+2}, s{sOR}, {2<<17}
    ; DMA: row_in4 = l/16 ; phi = (l/16) | ((w&1)<<2) ; chunk = (l%16) ^ (2*phi)
    v_lshrrev_b32 v22, 4, v0               ; l/16
    s_and_b32 s65, s60, 1
    s_lshl_b32 s65, s65, 2
    v_or_b32 v23, s65, v22                 ; phi
    v_lshlrev_b32 v23, 1, v23
    v_and_b32 v24, 15, v0
    v_xor_b32 v23, v23, v24
    v_lshlrev_b32 v23, 4, v23              ; chunk*16
    s_lshl_b32 s65, s60, 3
    v_add_u32 v25, s65, v22                ; row = 8w + l/16
    v_lshl_add_u32 v{vDKV}, v25, 8, v23
    v_lshl_add_u32 v{vDWQ}, v25, 13, v23
    ; x voffset = (l/4)*1152 + (l%4)*16 ; shuffle source lane = 4*(l%16) + l/16
    v_lshrrev_b32 v25, 2, v0
    v_and_b32 v26, 3, v0
    v_mul_u32_u24 v{vXO}, 1152, v25
    v_lshl_add_u32 v{vXO}, v26, 4, v{vXO}
    v_lshl_add_u32 v{vXP}, v24, 2, v22
    v_lshlrev_b32 v{vXP}, 2, v{vXP}
    ; K read addr: m=l%16,g=l/16: row=8*(m/4)+m%4; phi=m%8; addr=row*256+(((2s+g/2)^phi)*32)+(g%2)*16
    v_lshrrev_b32 v25, 2, v24
    v_lshlrev_b32 v25, 3, v25
    v_and_b32 v26, 3, v24
    v_add_u32 v25, v25, v26                ; row
    v_lshlrev_b32 v25, 8, v25
    v_and_b32 v26, 1, v22
    v_lshl_add_u32 v25, v26, 4, v25
    v_lshrrev_b32 v26, 1, v22              ; g/2
    v_and_b32 v27, 7, v24
    v_xor_b32 v26, v26, v27
    v_lshl_add_u32 v{vKA}, v26, 5, v25
    v_xor_b32 v{vKA+1}, 64, v{vKA}
    v_xor_b32 v{vKA+2}, 0x80, v{vKA}
    v_xor_b32 v{vKA+3}, 0xc0, v{vKA}
    ; tr read addr: g=l/16,r=(l/4)%4,c=l%4: row=8g+r; phi=r|((g&1)<<2); addr=row*256+((t^phi)*32)+c*8
    v_bfe_u32 v25, v0, 2, 2                ; r
    v_lshl_add_u32 v26, v22, 3, v25        ; row
    v_lshlrev_b32 v26, 8, v26
    v_and_b32 v27, 3, v0
    v_lshl_add_u32 v26, v27, 3, v26
    v_and_b32 v27, 1, v22
    v_lshl_or_b32 v25, v27, 2, v25         ; phi
    v_lshl_add_u32 v{vTA}, v25, 5, v26""")
    for t in range(1, 8):
        R(f"    v_xor_b32 v{vTA+t}, {t*32}, v{vTA}")
    SPLITCODE = f"""    ; Q image srd replaces X
    s_lshl_b32 s66, s61, 5
    s_add_u32 s66, s66, s62
    s_mul_i32 s66, s66, 40960
    s_add_u32 s66, s66, {QOFF}
    s_add_u32 s{sX}, s18, s66
    s_addc_u32 s{sX+1}, s19, 0
    s_mov_b32 s{sX+2}, 40960
    s_lshl_b32 s{sXR}, s64, 12
    s_add_u32 s{sXR+1}, s{sXR}, 4096
    s_add_u32 s{sXR+2}, s{sXR}, 8192
    v_lshlrev_b32 v{vXO}, 4, v0""" if SPLIT[0] else ""
    R(f"""    s_waitcnt lgkmcnt(0)
    ; X srd
    s_mul_i32 s66, s61, 184320
    s_add_u32 s{sX}, s4, s66
    s_addc_u32 s{sX+1}, s5, 0
    s_mov_b32 s{sX+2}, 184320
    s_mov_b32 s{sX+3}, 0x20000
    s_lshl_b32 s66, s61, 5
    s_add_u32 s66, s66, s62
    s_lshl_b32 s66, s66, 17
    {'s_mov_b32 s66, 0' if opts.get('kv_same') else ''}
    s_add_u32 s{sK}, s6, s66
    s_addc_u32 s{sK+1}, s7, 0
    s_mov_b32 s{sK+2}, 131072
    s_mov_b32 s{sK+3}, 0x20000
    s_add_u32 s{sV}, s8, s66
    s_addc_u32 s{sV+1}, s9, 0
    s_mov_b32 s{sV+2}, 131072
    s_mov_b32 s{sV+3}, 0x20000
    s_lshl_b32 s66, s62, 8
    s_add_u32 s{sWQ}, s10, s66
    s_addc_u32 s{sWQ+1}, s11, 0
    s_sub_u32 s{sWQ+2}, {576*8192}, s66
    s_mov_b32 s{sWQ+3}, 0x20000
    s_mul_i32 s66, s61, {10*131072}
    s_lshl_b32 s67, s62, 12
    s_add_u32 s66, s66, s67
    s_add_u32 s{sO}, s18, s66
    s_addc_u32 s{sO+1}, s19, 0
    s_mov_b32 s{sO+2}, {10*131072}
    s_mov_b32 s{sO+3}, 0x20000
{SPLITCODE}
    ; Wo transposition helpers (used by NT=2 waves)
    s_mov_b32 s{sWO}, s12
    s_mov_b32 s{sWO+1}, s13
    s_mov_b32 s{sWO+2}, {4096*1152}
    s_mov_b32 s{sWO+3}, 0x20000
    s_add_u32 s{sWT}, s18, {WOFF}
    s_addc_u32 s{sWT+1}, s19, 0
    s_mov_b32 s{sWT+2}, {6144*1024}
    s_mov_b32 s{sWT+3}, 0x20000
    s_lshl_b32 s66, s2, 1
    s_and_b32 s67, s60, 1
    s_add_u32 s66, s66, s67                ; W2
    s_lshl_b32 s{sWOF}, s66, 10
    s_and_b32 s67, s66, 127                ; ks
    s_mul_i32 s67, s67, {32*1152}
    s_lshr_b32 s66, s66, 7                 ; t
    s_lshl_b32 s66, s66, 5
    s_add_u32 s{sWOB}, s66, s67
    s_cmp_ge_u32 s60, 2
    s_cbranch_scc1 {K}_nt2""")
    gen_body(p, 3, K + "_a", opts)
    p.label(f"{K}_nt2")
    p.hist = []; p.vm = []; p.lgkm = []
    R(f"""    v_mul_u32_u24 v{vWOA}, {4*1152}, v22
    v_lshl_add_u32 v{vWOA}, v24, 1, v{vWOA}""")
    if opts.get('dma2', 1):
        R(f"""    ; DMA by roles 2,3: rows 16r'+4i+l/16 ; chunk = (l%16) ^ (2*(l/16)) ^ (8*((i>>1)&1))
    s_and_b32 s65, s60, 1
    s_lshl_b32 s{sW2048}, s65, 12
    v_lshlrev_b32 v23, 1, v22
    v_xor_b32 v23, v23, v24
    v_lshlrev_b32 v23, 4, v23
    s_lshl_b32 s65, s65, 4
    v_add_u32 v25, s65, v22
    v_lshl_add_u32 v{vDKV}, v25, 8, v23
    v_lshl_add_u32 v{vDWQ}, v25, 13, v23
    v_xor_b32 v{vDKV1}, 0x80, v{vDKV}
    v_xor_b32 v{vDWQ1}, 0x80, v{vDWQ}""")
    gen_body(p, 2, K + "_b", opts)
    p.label(f"{K}_done")
    R("    s_endpgm")
    desc = f""".amdhsa_kernel {K}
  .amdhsa_next_free_vgpr 256
  .amdhsa_next_free_sgpr 96
  .amdhsa_accum_offset 256
  .amdhsa_group_segment_fixed_size 0
  .amdhsa_kernarg_size 64
  .amdhsa_user_sgpr_count 2
  .amdhsa_user_sgpr_kernarg_segment_ptr 1
  .amdhsa_system_sgpr_workgroup_id_x 1
.end_amdhsa_kernel"""
    return p, desc, f"; @launch kernel={K} grid=(1024,1,1) block=(256,1,1) lds={NSTAGE_RING*16384}"
```

```python
from asmlib import *
import math, struct
C_SCALE = math.log2(math.e) / math.sqrt(128.0)
def f32bits(x): return "0x%08x" % struct.unpack('<I', struct.pack('<f', x))[0]
QOFF = 64 << 20
NR = 3
XB = 0; WB = 30720; DUM = WB + 3*16384
def gen_kernel_q(opts=None):
    opts = opts or {}
    p = Prog()
    K = "qproj_kernel"
    p.raw(f".globl {K}\n.p2align 8\n.type {K},@function\n{K}:")
    R = p.raw
    sX, sWQ, sQ = 20, 24, 28
    sSO = 32; sMW = 33; sMX = 34; sXR = 36
    sM3 = 40
    sSCL = 44; sQO = 46; sX3 = 48
    vDW, vDW1, vDX, vXA, vTA = 1, 2, 3, 4, 5
    vST = 9
    ACC = lambda t, n: 16 + (n*4 + t)*4
    AF = lambda ks, t: 176 + ((ks % 2)*4 + t)*4
    NB = 12
    BF = lambda i: 208 + (i % NB)*4
    R(f"""    s_cmp_ge_u32 s2, 512
    s_cbranch_scc1 {K}_done
    s_load_dwordx2 s[4:5], s[0:1], 0
    s_load_dwordx2 s[6:7], s[0:1], 24
    s_load_dwordx2 s[8:9], s[0:1], 56
    v_lshrrev_b32 v1, 6, v0
    v_and_b32 v0, 63, v0
    s_nop 0
    v_readfirstlane_b32 s60, v1            ; wave
    s_and_b32 s61, s2, 7
    s_lshr_b32 s62, s2, 3                  ; j 0..63
    s_and_b32 s63, s62, 3
    s_lshl_b32 s61, s61, 2
    s_add_u32 s61, s61, s63                ; b
    s_lshr_b32 s62, s62, 2
    s_mov_b32 s{sSCL}, {f32bits(C_SCALE)}
    s_mov_b32 s{sSCL+1}, {f32bits(C_SCALE)}
    v_lshrrev_b32 v22, 4, v0               ; l/16
    v_and_b32 v24, 15, v0
    s_and_b32 s65, s60, 1
    s_lshr_b32 s66, s60, 1
    s_lshl_b32 s{sMW}, s60, 12
    s_add_u32 s{sMW}, s{sMW}, {WB}
    v_lshlrev_b32 v23, 1, v22
    v_xor_b32 v23, v23, v24
    v_lshlrev_b32 v23, 4, v23
    s_lshl_b32 s67, s66, 8
    v_add_u32 v23, s67, v23
    s_lshl_b32 s67, s65, 4
    v_add_u32 v25, s67, v22
    v_lshl_add_u32 v{vDW}, v25, 13, v23
    v_xor_b32 v{vDW1}, 0x80, v{vDW}
    ; x DMA: q=l/4, chunk=(l%4)^f(q/4), f(j)=(((j^(j>>1))&1)<<1)|(j>>1), j = l/16
    v_lshrrev_b32 v25, 1, v22
    v_xor_b32 v26, v25, v22
    v_and_b32 v26, 1, v26
    v_lshl_or_b32 v26, v26, 1, v25         ; f(l/16)
    v_and_b32 v27, 3, v0
    v_xor_b32 v27, v27, v26
    v_lshrrev_b32 v25, 2, v0
    v_mul_u32_u24 v{vDX}, 1152, v25
    v_lshl_add_u32 v{vDX}, v27, 4, v{vDX}
    s_lshl_b32 s{sMX}, s60, 10
    s_mul_i32 s{sXR}, s60, {16*1152}
    s_add_u32 s{sXR+1}, s{sXR}, {64*1152}
    s_add_u32 s{sXR+2}, s{sXR}, {128*1152}
    s_cmp_lt_u32 s60, 2
    s_cselect_b32 s{sXR+2}, s{sXR+2}, 0
    s_cselect_b32 s{sX3+2}, 184320, 0""")
    for i in range(3):
        R(f"""    s_add_u32 s67, s{sMX}, {XB + i*10240 + 8192}
    s_cmp_lt_u32 s60, 2
    s_cselect_b32 s{sM3+i}, s67, {DUM}""")
    R(f"""    ; x read: q=l%16,g=l/16: q*64 + ((g ^ f(q/4))*16)
    v_lshrrev_b32 v25, 2, v24              ; j
    v_lshrrev_b32 v26, 1, v25
    v_xor_b32 v27, v26, v25
    v_and_b32 v27, 1, v27
    v_lshl_or_b32 v27, v27, 1, v26
    v_xor_b32 v27, v27, v22
    v_lshlrev_b32 v27, 4, v27
    v_lshl_add_u32 v{vXA}, v24, 6, v27
    v_bfe_u32 v25, v0, 2, 2
    v_lshl_add_u32 v26, v22, 3, v25
    v_lshlrev_b32 v26, 8, v26
    v_and_b32 v27, 3, v0
    v_lshl_add_u32 v26, v27, 3, v26
    v_and_b32 v27, 1, v22
    v_lshl_or_b32 v25, v27, 2, v25
    s_lshl_b32 s67, s65, 2
    v_xor_b32 v25, s67, v25
    v_lshl_add_u32 v26, v25, 5, v26
    s_lshl_b32 s67, s66, 13
    s_add_u32 s67, s67, {WB}""")
    for t in range(4):
        R(f"    v_xor_b32 v{vTA+t}, {t*32}, v26\n    v_add_u32 v{vTA+t}, s67, v{vTA+t}")
    R(f"""    v_lshlrev_b32 v{vST}, 4, v0
    s_waitcnt lgkmcnt(0)
    s_mul_i32 s67, s61, 184320
    s_add_u32 s{sX}, s4, s67
    s_addc_u32 s{sX+1}, s5, 0
    s_mov_b32 s{sX+2}, 184320
    s_mov_b32 s{sX+3}, 0x20000
    s_mov_b32 s{sX3}, s{sX}
    s_mov_b32 s{sX3+1}, s{sX+1}
    s_mov_b32 s{sX3+3}, 0x20000
    s_lshl_b32 s67, s62, 9
    s_add_u32 s{sWQ}, s6, s67
    s_addc_u32 s{sWQ+1}, s7, 0
    s_sub_u32 s{sWQ+2}, {576*8192}, s67
    s_mov_b32 s{sWQ+3}, 0x20000
    s_lshl_b32 s67, s61, 5
    s_lshl_b32 s68, s62, 1
    s_add_u32 s67, s67, s68
    s_add_u32 s67, s67, s66
    s_mul_i32 s67, s67, 40960
    s_add_u32 s67, s67, {QOFF}
    s_add_u32 s{sQ}, s8, s67
    s_addc_u32 s{sQ+1}, s9, 0
    s_mov_b32 s{sQ+2}, 40960
    s_mov_b32 s{sQ+3}, 0x20000
    s_lshl_b32 s{sQO}, s65, 11""")
    NK = 18
    def dma_units(ks):
        if ks >= NK: return []
        sl = ks % NR
        U = []
        for i in range(4):
            u = []
            if i == 0: u.append(salu(f"s_add_u32 m0, s{sMW}, {sl*16384}", rd=S(sMW), wr=[('s','m0')]))
            u.append(salu(f"s_mov_b32 s{sSO}, {ks*32*8192 + i*(4*8192-1024)}", wr=S(sSO)))
            u.append(buf_dma4((vDW, vDW1)[i >> 1], sWQ, s(sSO), i*1024, tag=('dma', ks)))
            U.append(u)
        for i in range(3):
            u = []
            if i < 2: u.append(salu(f"s_add_u32 m0, s{sMX}, {XB + sl*10240 + i*4096}", rd=S(sMX), wr=[('s','m0')]))
            else: u.append(salu(f"s_mov_b32 m0, s{sM3+sl}", rd=S(sM3+sl), wr=[('s','m0')]))
            u.append(salu(f"s_add_u32 s{sSO}, s{sXR+i}, {ks*64}", rd=S(sXR+i), wr=S(sSO)))
            u.append(buf_dma4(vDX, sX if i < 2 else sX3, s(sSO), 0, tag=('dma', ks)))
            U.append(u)
        return U
    dq = []
    def flush():
        while dq:
            for i_ in dq.pop(0): p.emit(i_)
    for ks in range(NR - 1):
        dq.extend(dma_units(ks)); flush()
    RD = []
    for ks in range(NK):
        sl = ks % NR
        for t in range(4):
            RD.append((ks, 'A', t, [ds_read_tr(AF(ks,t), vTA+t, sl*16384), ds_read_tr(AF(ks,t)+2, vTA+t, sl*16384+1024)]))
        for n in range(10):
            RD.append((ks, 'B', n, [ds_read_b128(BF(ks*10+n), vXA, XB + sl*10240 + n*1024)]))
    rp = [0]; synced = [-1]
    LAG = opts.get('q_lag', 4)
    def try_reads(done_b, maxn):
        k = 0
        while k < maxn and rp[0] < len(RD):
            ks, kind, i, ins = RD[rp[0]]
            if kind == 'A':
                if (ks - 2)*10 + 9 > done_b: return
            else:
                if ks*10 + i - NB > done_b: return
            if ks > synced[0]:
                if ks*10 - 1 - done_b > LAG: return
                flush()
                p.wait_tag(('dma', ks), lgkm=0)
                p.emit(barrier())
                dq.extend(dma_units(ks + NR - 1))
                synced[0] = ks
            for i_ in ins: p.emit(i_)
            rp[0] += 1; k += 1
    try_reads(-1, 14)
    mc = 0
    for ks in range(NK):
        for n in range(10):
            for t in range(4):
                p.emit(mfma16(ACC(t,n), AF(ks,t), BF(ks*10+n), None if ks == 0 else ACC(t,n)))
                g = ks*10 + n
                try_reads(g if t == 3 else g - 1, 1)
                mc += 1
                if dq and mc % opts.get('q_gap', 4) == 0:
                    for i_ in dq.pop(0): p.emit(i_)
    for n in range(10):
        for sp in range(2):
            a = ACC(2*sp, n); b = ACC(2*sp+1, n); q = 176 + ((n*2+sp) % 16)*4
            for base in (a, b):
                for i in range(4):
                    p.emit(valu("v_mul_f32", v(base+i), s(sSCL), v(base+i)))
            p.emit(valu("v_cvt_pk_bf16_f32", v(q), v(a), v(a+1)))
            p.emit(valu("v_cvt_pk_bf16_f32", v(q+1), v(a+2), v(a+3)))
            p.emit(valu("v_cvt_pk_bf16_f32", v(q+2), v(b), v(b+1)))
            p.emit(valu("v_cvt_pk_bf16_f32", v(q+3), v(b+2), v(b+3)))
        for sp in range(2):
            q = 176 + ((n*2+sp) % 16)*4
            p.emit(permswap(32, q, q+2)); p.emit(permswap(32, q+1, q+3))
        for sp in range(2):
            q = 176 + ((n*2+sp) % 16)*4
            p.emit(permswap(16, q, q+2)); p.emit(permswap(16, q+1, q+3))
        p.emit(salu(f"s_add_u32 s{sSO}, s{sQO}, {n*4096}", rd=S(sQO), wr=S(sSO)))
        for sp in range(2):
            q = 176 + ((n*2+sp) % 16)*4
            ins = buf_store(q, 4, vST, sQ, s(sSO), sp*1024)
            ins.wr = set(V(q, 4))
            p.emit(ins)
    p.label(f"{K}_done")
    R("    s_endpgm")
    desc = f""".amdhsa_kernel {K}
  .amdhsa_next_free_vgpr 256
  .amdhsa_next_free_sgpr 96
  .amdhsa_accum_offset 256
  .amdhsa_group_segment_fixed_size 0
  .amdhsa_kernarg_size 64
  .amdhsa_user_sgpr_count 2
  .amdhsa_user_sgpr_kernarg_segment_ptr 1
  .amdhsa_system_sgpr_workgroup_id_x 1
.end_amdhsa_kernel"""
    return p, desc, f"; @launch kernel={K} grid=(512,1,1) block=(256,1,1) lds={DUM+1024}"
```

```python
from asmlib import *
import math, re

NRING = [4]
C_SCALE = math.log2(math.e) / math.sqrt(128.0)
import struct
def f32bits(x): return "0x%08x" % struct.unpack('<I', struct.pack('<f', x))[0]

sX, sK, sV, sWQ, sO = 20, 24, 28, 32, 36
sSOFF = 40; sW2048 = 41; sTHR = 42; sSCL = 44
sXR = 46
sOR = 50
sRET = 54
sWO = 68; sWT = 72; sWOB = 76; sWOF = 77
vWOD = 92; vWOA = 116; vDKV1 = 117; vDWQ1 = 118; sSOF2 = 78; sWID4 = 79
WOFF = 48 << 20
vDKV, vDWQ, vXO = 1, 2, 3
vKA = 4; vTA = 8; vL = 16; vXP = 16; vT = 22
vLSAFE = [0, 2, 3]
sMODE = 43; sTLO = 49
vACC = 28; vQF = 124; vS = 172; vP = 196; vM = 220; vPOOL = 224
NPOOL = 8

SPLIT = [0]
W8 = [0]
sG64K = 90; sGW = 91; sMW = 92; sG = 93
FLGB = 131072
KT = [94, 95, 96, 97, 98, 99, 100, 101, 53]; sXT = 56; sWB = 59; sKVR = 67; sHG = 63
def slot_of(n, ti):
    if not W8[0]: return (n % NRING[0])*16384 + ti*8192
    if n <= 8: return ((n//2) % 4)*16384 + ti*8192
    return ((n-8) % 4)*16384 + ti*8192
QOFF = 64 << 20
def tiles_of_stage(n):
    if SPLIT[0]: n += 9
    if n <= 8: return [('W', 2*n), ('W', 2*n+1)]
    if n == 9: return [('K', 0), ('K', 1)]
    if n <= 23: return [('V', n-10), ('K', n-8)]
    return [('V', 14), ('V', 15)]

def gen_body(p, NT, name, opts):
    SP = SPLIT[0]; NST = 16 if SP else 25
    if opts.get('nocompute'):
        oe = Prog.emit
        def em(ins, p=p):
            if ins.kind in ('mfma', 'ds', 'trans', 'perm') or (ins.kind == 'valu' and 'vcc' not in ins.text and 'lshl' not in ins.text): return
            oe(p, ins)
        p.emit = em
    ACC = lambda t, n: vACC + (t*NT + n)*4
    QF = lambda s_, n: vQF + (s_*NT + n)*4
    Sx = lambda kt, n: vS + (kt*NT + n)*4
    Px = lambda pb, n: vP + (pb*NT + n)*4
    NM = lambda n: vNM + n*4
    XR = lambda ks, n: vQF + ((ks % 6)*NT + n)*4
    XF = lambda ks, n: 196 + ((ks % 2)*NT + n)*4
    LP = lambda n: vL + 2*n
    def pkadd(d, a, b):
        return Ins(f"v_pk_add_f32 {vr(d,2)}, {vr(a,2)}, {vr(b,2)}", 'valu', rd=V(a,2)+V(b,2), wr=V(d,2))
    def xshuf(ks):
        if ks >= 18 or opts.get('noshuf'): return []
        return [Ins(f"ds_bpermute_b32 v{XF(ks,n)+i}, v{vXP}, v{XR(ks,n)+i}", 'ds', rd=V(vXP)+V(XR(ks,n)+i), wr=V(XF(ks,n)+i))
                for n in range(NT) for i in range(4)]
    kvflags = opts.get('kvflags', '')

    DM2 = opts.get('dma2', 1)
    ROT = opts.get('rot', 0)
    def dma_units(n):
        U = []
        if n >= NST or opts.get('nodma'): return U
        if DM2 and NT == 3: return U
        for ti, (kind, idx) in enumerate(tiles_of_stage(n)):
            slot = slot_of(n, ti)
            npc = 4 if DM2 else 2
            if W8[0] and kind == 'W':
                if ti: continue
                for i in range(4):
                    u = []
                    if i == 0: u.append(salu(f"s_add_u32 m0, s{sMW}, {slot + (n % 2)*65536}", rd=S(sMW), wr=[('s','m0')]))
                    if ROT:
                        if i == 0:
                            u.append(salu(f"s_lshl_b32 s{sWB}, s{KT[n]}, 12", rd=S(KT[n]), wr=S(sWB)))
                            u.append(salu(f"s_add_u32 s{sWB}, s{sWB}, s{sGW}", rd=S(sWB)+S(sGW), wr=S(sWB)))
                        u.append(salu(f"s_add_u32 s{sSOFF}, s{sWB}, {i*(4*8192 - 1024)}", rd=S(sWB), wr=S(sSOFF)))
                    else:
                        u.append(salu(f"s_add_u32 s{sSOFF}, s{sGW}, {idx*32*8192 + i*(4*8192 - 1024)}", rd=S(sGW), wr=S(sSOFF)))
                    u.append(buf_dma4((vDWQ, vDWQ1)[i >> 1], sWQ, s(sSOFF), i*1024, tag=('dma', n)))
                    U.append(u)
                continue
            for i in range(npc):
                u = []
                if i == 0: u.append(salu(f"s_add_u32 m0, s{sW2048}, {slot}", rd=S(sW2048), wr=[('s','m0')]))
                vsel = (i >> 1) if DM2 else 0
                if kind == 'W':
                    if ROT:
                        if i == 0 and ti == 0: u.append(salu(f"s_lshl_b32 s{sWB}, s{KT[n]}, 12", rd=S(KT[n]), wr=S(sWB)))
                        u.append(salu(f"s_add_u32 s{sSOFF}, s{sWB}, {ti*32*8192 + i*(4*8192 - 1024)}", rd=S(sWB), wr=S(sSOFF)))
                    else:
                        u.append(salu(f"s_mov_b32 s{sSOFF}, {idx*32*8192 + i*(4*8192 - 1024)}", wr=S(sSOFF)))
                    u.append(buf_dma4((vDWQ, vDWQ1)[vsel], sWQ, s(sSOFF), i*1024, tag=('dma', n)))
                else:
                    srd = sK if kind == 'K' else sV
                    if i == 0 and opts.get('kvrot'):
                        u.append(salu(f"s_add_u32 s{sSOFF}, s{sKVR}, {idx*8192}", rd=S(sKVR), wr=S(sSOFF)))
                        u.append(salu(f"s_and_b32 s{sSOFF}, s{sSOFF}, 0x1ffff", rd=S(sSOFF), wr=S(sSOFF)))
                    elif i == 0: u.append(salu(f"s_mov_b32 s{sSOFF}, {idx*8192}", wr=S(sSOFF)))
                    u.append(buf_dma4((vDKV, vDKV1)[vsel], srd, s(sSOFF), i*1024, tag=('dma', n), flags=kvflags))
                U.append(u)
        return U
    dq = []
    def issue_dma(n, spread=False):
        while dq:
            for i_ in dq.pop(0): p.emit(i_)
        if spread and opts.get('spread', 1): dq.extend(dma_units(n))
        else:
            for u in dma_units(n):
                for i_ in u: p.emit(i_)
    def xloads(ks):
        if ks >= 18 or opts.get('nox'): return []
        if ROT:
            L = []
            for n in range(NT):
                L.append(salu(f"s_add_u32 s{sXT+n}, s{sXR+n}, s{KT[ks//2]}", rd=S(sXR+n)+S(KT[ks//2]), wr=S(sXT+n)))
                L += [buf_load4(XR(k_, n), vXO, sX, s(sXT+n), (k_-ks)*64) for k_ in (ks, ks+1)]
            return L
        return [buf_load4(XR(k_, n), vXO, sX, s(sXR+n), k_*64) for n in range(NT) for k_ in (ks, ks+1)]

    def exp_list(pb, kt, first_in_tile):
        pairs = []
        for n in range(NT):
            for hp in range(2):
                pairs.append((n, hp))
        e = []; post = []
        res = []
        for i, (n, hp) in enumerate(pairs):
            ta = vT + ((i + kt*len(pairs)) % 3)*2; tb = ta + 1
            src = Sx(kt, n) + 2*hp
            ex = [valu("v_exp_f32", v(ta), v(src), kind='trans'), valu("v_exp_f32", v(tb), v(src+1), kind='trans')]
            po = [valu("v_cvt_pk_bf16_f32", v(Px(pb, n) + 2*kt + hp), v(ta), v(tb))]
            if opts.get('pkadd'): po.append(pkadd(LP(n), LP(n), ta))
            else:
                po.append(valu("v_add_f32", v(LP(n)), v(LP(n)), v(ta)))
                po.append(valu("v_add_f32", v(LP(n)+1), v(LP(n)+1), v(tb)))
            res += ex
            res += post
            post = po
        res += post
        if opts.get('noexp'): res = [x for x in res if x.kind != 'trans']
        return res
    def rowmax(n, d, t):
        a = Sx(0, n); b = Sx(1, n)
        L = [valu("v_max3_f32", v(d), v(a), v(a+1), v(a+2)),
             valu("v_max3_f32", v(t), v(a+3), v(b), v(b+1)),
             valu("v_max3_f32", v(d), v(d), v(b+2), v(b+3)),
             valu("v_max_f32", v(d), v(d), v(t)),
             valu("v_mov_b32", v(t), v(d)),
             permswap(32, d, t),
             valu("v_max_f32", v(d), v(d), v(t)),
             valu("v_mov_b32", v(t), v(d)),
             permswap(16, d, t),
             valu("v_max_f32", v(d), v(d), v(t))]
        return L
    fill = []
    site = [0]
    def check(pb):
        while fill: p.emit(fill.pop(0))
        lab = f"{name}_skip{site[0]}"; site[0] += 1
        p.emit(salu(f"s_cmp_eq_u32 s{sMODE}, 0", rd=S(sMODE)))
        p.emit(Ins(f"s_cbranch_scc1 {lab}", 'salu', rd=[]))
        p.emit(Ins(f"s_call_b64 {sr(sRET,2)}, {name}_rare{pb}", 'salu'))
        p.label(lab)

    def init_sm():
        for n in range(NT):
            p.emit(valu("v_mov_b32", v(LP(n)), 0)); p.emit(valu("v_mov_b32", v(LP(n)+1), 0))
            p.emit(valu("v_mov_b32", v(vLSAFE[n]), 0)); p.emit(valu("v_mov_b32", v(vM+n), "0xff7fffff"))

    def q_convert():
        for s_ in range(4):
            for n in range(NT):
                a = ACC(2*s_, n); b = ACC(2*s_+1, n)
                for base in (a, b):
                    for i in (0, 2):
                        p.emit(Ins(f"v_pk_mul_f32 {vr(base+i,2)}, {vr(base+i,2)}, {sr(sSCL,2)}", 'valu',
                                   rd=V(base+i,2)+S(sSCL,2), wr=V(base+i,2)))
            for n in range(NT):
                a = ACC(2*s_, n); b = ACC(2*s_+1, n); q = QF(s_, n)
                p.emit(valu("v_cvt_pk_bf16_f32", v(q), v(a), v(a+1)))
                p.emit(valu("v_cvt_pk_bf16_f32", v(q+1), v(a+2), v(a+3)))
                p.emit(valu("v_cvt_pk_bf16_f32", v(q+2), v(b), v(b+1)))
                p.emit(valu("v_cvt_pk_bf16_f32", v(q+3), v(b+2), v(b+3)))
            for n in range(NT):
                q = QF(s_, n)
                p.emit(permswap(32, q, q+2)); p.emit(permswap(32, q+1, q+3))
            for n in range(NT):
                q = QF(s_, n)
                p.emit(permswap(16, q, q+2)); p.emit(permswap(16, q+1, q+3))

    FU = []
    for n in range(NST):
        for ti, (kind, idx) in enumerate(tiles_of_stage(n)):
            slot = slot_of(n, ti)
            for f in range(8):
                d = dict(stage=n, kind=kind, idx=idx, f=f, pre=[], post=[])
                if kind in 'WV':
                    t = f
                    adj = []
                    if W8[0] and kind == 'W' and ti == 0 and n >= 1: adj = [valu("v_xor_b32", v(vTA+t), "0x10000", v(vTA+t))]
                    if W8[0] and kind == 'V' and idx == 0: adj = [valu("v_add_u32", v(vTA+t), s(sG64K), v(vTA+t))]
                    d['reads'] = (lambda r, t=t, slot=slot, adj=adj: adj + [ds_read_tr(r, vTA+t, slot), ds_read_tr(r+2, vTA+t, slot+1024)])
                    if kind == 'W':
                        d['mf'] = (lambda r, t=t, idx=idx: [mfma16(ACC(t,n_), r, XF(idx,n_), None if idx == 0 else ACC(t,n_)) for n_ in range(NT)])
                    else:
                        d['mf'] = (lambda r, t=t, idx=idx: [mfma16(ACC(t,n_), r, Px(idx%2,n_), None if idx == 0 else ACC(t,n_)) for n_ in range(NT)])
                else:
                    kt, s_ = f // 4, f % 4
                    d['reads'] = (lambda r, kt=kt, s_=s_, slot=slot: [ds_read_b128(r, vKA+s_, slot+kt*1024)])
                    def mf(r, kt=kt, s_=s_, idx=idx):
                        return [mfma16(Sx(kt,n_), r, QF(s_,n_), None if s_ == 0 else Sx(kt,n_)) for n_ in range(NT)]
                    d['mf'] = mf
                FU.append(d)
    def find(kind, idx, f):
        for i, d in enumerate(FU):
            if d['kind'] == kind and d['idx'] == idx and d['f'] == f: return i
        raise KeyError
    for ks in range(0 if SP else 18):
        FU[find('W', ks, 0)]['post'].append(lambda ks=ks: fill.extend(xshuf(ks+1) + (xloads(ks+6) if ks % 2 == 0 else [])))
    def stamp(sreg):
        if opts.get('diag'):
            p.wait(lgkm=0)
            p.raw(f"    s_memrealtime s[{sreg}:{sreg+1}]\n    s_waitcnt lgkmcnt(0)")
    FU[find('K', 0, 0)]['pre'].append(lambda: stamp(82))
    FU[1]['pre'].append(lambda: stamp(86))
    if not SP: FU[find('K', 0, 0)]['pre'].append(q_convert)
    FU[find('K', 0, 0)]['pre'].append(init_sm)
    if opts.get('prio_att') is not None:
        FU[find('K', 0, 0)]['pre'].append(lambda: p.emit(salu(f"s_setprio {opts['prio_att']}")))
        FU[0]['pre'].append(lambda: p.emit(salu(f"s_setprio {opts['prio_q']}")))
    deadline = {}
    for j in range(0, 16):
        i0 = find('K', j, 4)
        FU[i0]['post'].append(lambda j=j: fill.extend(exp_list(j%2, 0, True)))
        i1 = find('K', j, 7) + 1
        FU[i1]['post' if j else 'pre'].append(lambda j=j: fill.extend(exp_list(j%2, 1, False)))
        ic = find('K', j+1, 0) if j < 15 else find('V', 15, 0)
        FU[ic]['pre'].append(lambda j=j: check(j%2))
        for i in range(i0, ic): deadline[i] = (i0, i1, ic)

    if opts.get('nox'):
        for r_ in range(124, 220): p.raw(f"    v_mov_b32 v{r_}, 0")
    if SP:
        issue_dma(0)
        for s_ in range(4):
            for n in range(NT): p.emit(buf_load4(QF(s_, n), vXO, sX, s(sXR+n), s_*1024))
        for n_ in range(1, NRING[0]-1): issue_dma(n_)
    else:
        issue_dma(0)
        for i_ in xloads(0): p.emit(i_)
        issue_dma(1)
        for i_ in xloads(2): p.emit(i_)
        issue_dma(2)
        for i_ in xloads(4): p.emit(i_)
        if W8[0]:
            for n_ in range(3, opts.get('wdepth', 8)): issue_dma(n_)
        else:
            for n_ in range(3, NRING[0]-1): issue_dma(n_)
        for i_ in xshuf(0): p.emit(i_)
    def wo_loads():
        for i in range(3):
            for half in range(2):
                p.emit(salu(f"s_add_u32 s{sSOF2}, s{sWOB}, {512*i + half*16*1152}", rd=S(sWOB), wr=S(sSOF2)))
                for e in range(4):
                    d = vWOD + i*8 + half*4 + e
                    p.emit(buf_load_u16(d, vWOA, sWO, s(sSOF2), e*1152))

    if NT == 2 and opts.get('wo_t', True):
        FU[find('V', 2, 0)]['pre'].append(wo_loads)
    bias = {}
    rp = [0]
    synced = [-1]
    SYNC_LAG = opts.get('sync_lag', 3)
    def sync(n):
        while dq:
            for i_ in dq.pop(0): p.emit(i_)
        p.wait_tag(('dma', n), lgkm=0)
        if not opts.get('nobar'): p.emit(barrier())
        if W8[0]:
            wd = opts.get('wdepth', 8)
            todo = []
            if n >= 1 and wd - 1 + n <= 8: todo.append(wd - 1 + n)
            for m_, at in enumerate(opts.get('kv_early', [4, 6, 8])):
                if at == n: todo.append(9 + m_)
            if n >= 9: todo.append(n + 3)
            for t_ in todo: dq.extend(dma_units(t_))
        else: issue_dma(n + NRING[0] - 1, True)
        synced[0] = n
    def try_reads(cur_done, maxn):
        k = 0
        while k < maxn and rp[0] < len(FU) and rp[0] - NPOOL <= cur_done:
            d = FU[rp[0]]
            if d['stage'] > synced[0]:
                if rp[0] - cur_done - 1 > SYNC_LAG: return
                sync(d['stage'])
            rl = d['reads'](vPOOL + (rp[0] % NPOOL)*4)
            if opts.get('halfread') == 1: rl = rl[:-1] if len(rl) > 1 else (rl if d['f'] % 2 == 0 else [])
            if opts.get('halfread') == 2: rl = []
            if opts.get('halfread') == 3 and d['kind'] == 'K': rl = []
            for i_ in rl:
                if i_.kind == 'ds' and NRING[0] > 4:
                    m_ = re.match(r'(\S+ \S+) v(\d+) offset:(\d+)', i_.text)
                    areg = int(m_.group(2)); off = int(m_.group(3))
                    want = 32768 if off >= 65536 else (0 if off < 32768 else bias.get(areg, 0))
                    if want != bias.get(areg, 0):
                        p.emit(valu("v_xor_b32", v(areg), "0x8000", v(areg))); bias[areg] = want
                    i_.text = f"{m_.group(1)} v{areg} offset:{off - want}"
                p.emit(i_)
            rp[0] += 1; k += 1
    try_reads(-1, NPOOL)
    mcount = [0]
    cost = lambda i_: 2 if i_.kind == 'trans' else 1
    for i, d in enumerate(FU):
        for f_ in d['pre']: f_()
        assert rp[0] > i
        ms = d['mf'](vPOOL + (i % NPOOL)*4)
        for mi, m in enumerate(ms):
            p.emit(m)
            last = (mi == len(ms) - 1)
            try_reads(i if last else i - 1, 1)
            mcount[0] += 1
            if dq and mcount[0] % opts.get('dmagap', 3) == 0:
                for i_ in dq.pop(0): p.emit(i_)
            if fill:
                if i in deadline:
                    i0, i1, ic = deadline[i]
                    slots_left = (ic - i - 1)*NT + (len(ms) - 1 - mi) + 1
                    tot = sum(cost(x) for x in fill)
                    if i <= i1:
                        tot += NT*(8 + 2 + 4)
                    budget = math.ceil(tot / max(slots_left, 1))
                else:
                    budget = 1
                while fill and budget > 0:
                    x = fill.pop(0); budget -= cost(x); p.emit(x)
        for f_ in d['post']: f_()
    while fill: p.emit(fill.pop(0))
    if opts.get('nocompute'): del p.emit
    for n in range(NT): p.emit(valu("v_add_f32", v(LP(n)), v(LP(n)), v(LP(n)+1)))
    for n in range(NT): p.emit(valu("v_mov_b32", v(vT+n), v(LP(n))))
    for n in range(NT): p.emit(permswap(32, LP(n), vT+n))
    for n in range(NT): p.emit(valu("v_add_f32", v(LP(n)), v(LP(n)), v(vT+n)))
    for n in range(NT): p.emit(valu("v_mov_b32", v(vT+n), v(LP(n))))
    for n in range(NT): p.emit(permswap(16, LP(n), vT+n))
    for n in range(NT): p.emit(valu("v_add_f32", v(LP(n)), v(LP(n)), v(vT+n)))
    p.emit(valu("v_add_f32", v(vT), v(LP(0)), v(LP(1))))
    if NT == 3: p.emit(valu("v_add_f32", v(vT), v(vT), v(LP(2))))
    if NT == 3: p.emit(valu("v_min3_f32", v(vT+1), v(LP(0)), v(LP(1)), v(LP(2))))
    else: p.emit(valu("v_min_f32", v(vT+1), v(LP(0)), v(LP(1))))
    p.emit(Ins(f"v_cmp_nge_f32 vcc, s{sTHR}, v{vT}", 'valu', rd=V(vT)+S(sTHR), wr=[('s','vcc')]))
    p.emit(Ins(f"v_cmp_nle_f32 s[{sRET}:{sRET+1}], s{sTLO}, v{vT+1}", 'valu', rd=V(vT+1)+S(sTLO), wr=S(sRET,2)))
    p.nop(2)
    p.emit(salu(f"s_or_b64 vcc, vcc, s[{sRET}:{sRET+1}]"))
    p.emit(Ins(f"v_mov_b32 v{vT+2}, s{sWID4}", 'valu', rd=S(sWID4), wr=V(vT+2)))
    p.emit(Ins(f"v_mov_b32 v{vT+3}, {FLGB if W8[0] else 0}", 'valu', wr=V(vT+3)))
    p.nop(2)
    p.emit(salu(f"s_cmp_lg_u64 vcc, 0"))
    p.emit(salu(f"s_cselect_b32 s{sSOFF}, 1, 0", wr=S(sSOFF)))
    p.emit(Ins(f"v_mov_b32 v{vT+1}, s{sSOFF}", 'valu', rd=S(sSOFF), wr=V(vT+1)))
    FLG = 0 if W8[0] else ((NST-2) % NRING[0])*16384
    p.emit(Ins(f"ds_write_b32 v{vT+2}, v{vT+1} offset:{FLG}", 'ds', rd=V(vT+1)+V(vT+2)))
    for n in range(NT): p.emit(valu("v_rcp_f32", v(LP(n)), v(LP(n)), kind='trans'))
    p.emit(Ins(f"v_mbcnt_lo_u32_b32 v{vDKV}, -1, 0", 'valu', wr=V(vDKV)))
    p.emit(Ins(f"v_mbcnt_hi_u32_b32 v{vDKV}, -1, v{vDKV}", 'valu', rd=V(vDKV), wr=V(vDKV)))
    p.wait(lgkm=0)
    p.emit(barrier())
    p.emit(ds_read_b128(vPOOL, vT+3, FLG))
    if W8[0]:
        p.emit(ds_read_b128(vPOOL+4, vT+3, FLG+16))
        p.emit(valu("v_or3_b32", v(vPOOL), v(vPOOL), v(vPOOL+4), v(vPOOL+5)))
        p.emit(valu("v_or3_b32", v(vPOOL), v(vPOOL), v(vPOOL+6), v(vPOOL+7)))
    p.emit(valu("v_mov_b32", v(0), v(vDKV)))
    p.emit(valu("v_lshlrev_b32", v(vDWQ), 4, v(vDKV)))
    p.emit(valu("v_or3_b32", v(vPOOL), v(vPOOL), v(vPOOL+1), v(vPOOL+2)))
    p.emit(valu("v_or_b32", v(vPOOL), v(vPOOL), v(vPOOL+3)))
    p.emit(Ins(f"v_readfirstlane_b32 s{sSOFF}, v{vPOOL}", 'valu', rd=V(vPOOL), wr=S(sSOFF)))
    p.nop(2)
    p.emit(salu(f"s_andn2_b32 s{sSOFF}, s{sSOFF}, s{sMODE}", rd=S(sSOFF)+S(sMODE), wr=S(sSOFF)))
    if opts.get('nocompute') or opts.get('nodma') or opts.get('nox'): p.emit(salu(f"s_branch {name}_fin"))
    p.emit(salu(f"s_cbranch_scc0 {name}_fin"))
    p.raw(f"    s_mov_b32 s{sMODE}, 1\n    s_waitcnt vmcnt(0) lgkmcnt(0)\n    s_branch attn_kernel_restart")
    p.label(f"{name}_fin")
    for s_ in range(4):
        for n in range(NT):
            a = ACC(2*s_, n); b = ACC(2*s_+1, n); q = QF(s_, n)
            for base in (a, b):
                for i in range(4):
                    p.emit(valu("v_mul_f32", v(base+i), v(base+i), v(LP(n))))
            p.emit(valu("v_cvt_pk_bf16_f32", v(q), v(a), v(a+1)))
            p.emit(valu("v_cvt_pk_bf16_f32", v(q+1), v(a+2), v(a+3)))
            p.emit(valu("v_cvt_pk_bf16_f32", v(q+2), v(b), v(b+1)))
            p.emit(valu("v_cvt_pk_bf16_f32", v(q+3), v(b+2), v(b+3)))
            p.emit(buf_store(q, 4, vDWQ, sO, s(sOR+n), s_*1024, flags=opts.get('oflags', '')))
    if NT == 2 and opts.get('wo_t', True):
        for i in range(3):
            p.emit(salu(f"s_add_u32 s{sSOFF}, s{sWOF}, {2048*1024*i}", rd=S(sWOF), wr=S(sSOFF)))
            for k in range(4):
                p.emit(valu("v_lshl_or_b32", v(vWOD + i*8 + k), v(vWOD + i*8 + 2*k + 1), 16, v(vWOD + i*8 + 2*k)))
            p.emit(buf_store(vWOD + i*8, 4, vDWQ, sWT, s(sSOFF), 0, flags=opts.get('oflags', '')))
    if opts.get('merge'):
        p.raw(f"""    s_mov_b32 s{sX}, s16
    s_mov_b32 s{sX+1}, s17
    s_mov_b32 s{sX+2}, 256
    v_mov_b32 v{vT}, 1
    s_mov_b64 exec, 1
    s_waitcnt vmcnt(0)
    buffer_atomic_add v{vT}, off, s[{sX}:{sX+3}], s{sHG} sc1
    s_mov_b64 exec, -1""")
    if opts.get('diag'):
        stamp(84)
        p.raw(f"""    s_waitcnt vmcnt(0)
    s_getreg_b32 s88, hwreg(HW_REG_HW_ID)
    s_getreg_b32 s89, hwreg(HW_REG_XCC_ID)
    v_mov_b32 v28, s80
    v_mov_b32 v29, s82
    v_mov_b32 v30, s84
    v_mov_b32 v31, s88
    v_mov_b32 v32, s89
    v_mov_b32 v33, s86
    v_mov_b32 v34, 0
    v_mov_b32 v35, 0
    s_lshl_b32 s88, s2, {3 if W8[0] else 2}
    s_add_u32 s88, s88, s60
    {f's_lshl_b32 s89, s{sG}, 2' if W8[0] else 's_mov_b32 s89, 0'}
    s_add_u32 s88, s88, s89
    s_lshl_b32 s88, s88, 5
    s_add_u32 s88, s88, {8<<20}
    s_mov_b32 s{sWT+2}, {16<<20}
    v_mov_b32 v36, 0
    s_nop 4
    buffer_store_dwordx4 v[28:31], v36, s[{sWT}:{sWT+3}], s88 offen
    buffer_store_dwordx4 v[32:35], v36, s[{sWT}:{sWT+3}], s88 offen offset:16""")
    p.emit(Ins("s_endpgm", 'salu'))
    for pb in range(2):
        p.label(f"{name}_rare{pb}")
        p.hist = []; sv = (p.vm, p.lgkm); p.vm = []; p.lgkm = []
        p.nop(12)
        for n in range(NT):
            for i_ in rowmax(n, vT, vT+1): p.emit(i_)
            p.emit(valu("v_max_f32", v(vT), v(vM+n), v(vT)))
            p.emit(valu("v_sub_f32", v(vT+1), v(vM+n), v(vT)))
            p.emit(valu("v_exp_f32", v(vT+1), v(vT+1), kind='trans'))
            p.emit(valu("v_mov_b32", v(vM+n), v(vT)))
            for kt in range(2):
                for i in range(4):
                    p.emit(valu("v_sub_f32", v(Sx(kt,n)+i), v(Sx(kt,n)+i), v(vT)))
            p.emit(valu("v_mul_f32", v(LP(n)), v(vLSAFE[n]), v(vT+1)))
            p.emit(valu("v_mov_b32", v(LP(n)+1), 0))
            for t in range(8):
                for i in range(4):
                    p.emit(valu("v_mul_f32", v(ACC(t,n)+i), v(ACC(t,n)+i), v(vT+1)))
        for kt in range(2):
            for i_ in exp_list(pb, kt, True): p.emit(i_)
        for n in range(NT):
            p.emit(valu("v_add_f32", v(vLSAFE[n]), v(LP(n)), v(LP(n)+1)))
        p.nop(4)
        p.emit(Ins(f"s_setpc_b64 {sr(sRET,2)}", 'salu'))
        p.vm, p.lgkm = sv

def gen_kernel_a(opts=None):
    opts = opts or {}
    SPLIT[0] = opts.get('split', 0)
    W8[0] = opts.get('w8', 0)
    NRING[0] = opts.get('nring', 4)
    p = Prog()
    K = "attn_kernel"
    ROTCODE = ''
    WOMAP = ''
    if opts.get('merge'):
        WOMAP = f"""    s_lshl_b32 s66, s61, 1
    s_add_u32 s66, s66, s67                ; u
    s_and_b32 s67, s66, 3
    s_lshr_b32 s66, s66, 2
    s_lshl_b32 s66, s66, 7
    s_add_u32 s66, s66, s67
    s_lshl_b32 s67, s62, 2
    s_add_u32 s66, s66, s67                ; W2 = (u>>2)*128 + 4h + (u&3)
    s_lshr_b32 s{sHG}, s62, 3
    s_lshl_b32 s{sHG}, s{sHG}, 6"""
    if opts.get('rot'):
        ROTCODE = f"""    s_mul_i32 s64, s{KT[0]}, 57
    s_lshr_b32 s64, s64, 9
    s_mul_i32 s64, s64, 9
    s_sub_u32 s{KT[0]}, s{KT[0]}, s64
    s_lshl_b32 s{KT[0]}, s{KT[0]}, 7
""" + ''.join(f"""    s_add_u32 s{KT[i]}, s{KT[i-1]}, 128
    s_cmp_eq_u32 s{KT[i]}, 1152
    s_cselect_b32 s{KT[i]}, 0, s{KT[i]}
""" for i in range(1, 9))
    lb = opts.get('map_lb', 2)
    if opts.get('map_hfast'):
        MAPCODE = f"""    s_and_b32 s63, s62, {(128 >> lb) - 1}      ; h local
    s_lshr_b32 s62, s62, {7 - lb}          ; b local
    s_and_b32 s64, s61, {(32 >> lb) - 1}
    s_lshr_b32 s65, s61, {5 - lb}
    s_lshl_b32 s61, s64, {lb}
    s_add_u32 s61, s61, s62                ; b
    s_lshl_b32 s65, s65, {7 - lb}
    s_add_u32 s62, s65, s63                ; h"""
    else:
        MAPCODE = f"""    s_and_b32 s63, s62, {(1 << lb) - 1}      ; b local
    s_lshr_b32 s62, s62, {lb}              ; h local
    s_mul_i32 s{KT[0]}, s63, {opts.get('rot_mb', 1)}
    s_add_u32 s{KT[0]}, s{KT[0]}, s62
    s_and_b32 s64, s61, {(32 >> lb) - 1}
    s_lshr_b32 s65, s61, {5 - lb}
    s_lshl_b32 s61, s64, {lb}
    s_add_u32 s61, s61, s63                ; b
    s_lshl_b32 s65, s65, {7 - lb}
    s_add_u32 s62, s65, s62                ; h"""
    p.raw(f".globl {K}\n.p2align 8\n.type {K},@function\n{K}:")
    R = p.raw
    if W8[0]: R(f"""    s_cmp_ge_u32 s2, {opts.get("a_lim", 512)}
    s_cbranch_scc1 {K}_done
    s_load_dwordx16 s[4:19], s[0:1], 0
    {'s_memrealtime s[80:81]' if opts.get('diag') else ''}
    v_lshrrev_b32 v1, 6, v0
    v_and_b32 v0, 63, v0
    s_getreg_b32 s61, hwreg(HW_REG_HW_ID)
    v_readfirstlane_b32 s60, v1
    s_mov_b32 s{sMODE}, {opts.get('mode0', 0)}
    ; idx = 4*(slot&1) + (simd ^ (2*(slot&1))); used only if the eight are distinct
    s_bfe_u32 s62, s61, 0x20004
    s_and_b32 s61, s61, 1
    s_mul_i32 s61, s61, 6
    s_xor_b32 s62, s62, s61
    s_lshl_b32 s63, 1, s62
    v_mov_b32 v2, s63
    v_mov_b32 v3, {FLGB}
    v_lshl_add_u32 v1, v1, 2, v3
    ds_write_b32 v1, v2
    s_lshr_b32 s61, s60, 2
    s_lshl_b32 s61, s61, 1
    s_xor_b32 s60, s60, s61                ; fallback idx
    s_waitcnt lgkmcnt(0)
    s_barrier
    ds_read_b128 v[4:7], v3
    ds_read_b128 v[8:11], v3 offset:16
    s_waitcnt lgkmcnt(0)
    v_or3_b32 v4, v4, v5, v6
    v_or3_b32 v4, v4, v7, v8
    v_or3_b32 v4, v4, v9, v10
    v_or_b32 v4, v4, v11
    s_nop 0
    v_readfirstlane_b32 s63, v4
    s_nop 1
    s_cmp_eq_u32 s63, 255
    {'s_cselect_b32 s60, s62, s60' if opts.get('roles', 1) else ''}
    s_lshl_b32 s{sWID4}, s60, 2
    s_add_u32 s{sWID4}, s{sWID4}, {FLGB}
    s_lshr_b32 s{sG}, s60, 2
    s_and_b32 s60, s60, 3
    s_lshl_b32 s{sG64K}, s{sG}, 16
    s_lshl_b32 s{sGW}, s{sG}, 18
{K}_restart:
    s_and_b32 s61, s2, 7                   ; xcd
    s_lshr_b32 s62, s2, 3                  ; j
    s_and_b32 s63, s62, 3
    s_lshr_b32 s62, s62, 2                 ; h local
    s_lshl_b32 s{KT[0]}, s63, 1
    s_add_u32 s{KT[0]}, s{KT[0]}, s62
    s_and_b32 s64, s61, 3
    s_lshr_b32 s65, s61, 2
    s_lshl_b32 s61, s64, 2
    s_add_u32 s61, s61, s63                ; b pair
    s_lshl_b32 s61, s61, 1
    s_add_u32 s61, s61, s{sG}              ; b
    s_lshl_b32 s65, s65, 4
    s_add_u32 s62, s62, s65                ; h""")
    else:
        R(f"""    s_cmp_ge_u32 s2, {opts.get("a_lim", 1024)}
    s_cbranch_scc1 {K}_{'bentry' if opts.get('merge') else 'done'}
    s_load_dwordx16 s[4:19], s[0:1], 0
    {'s_memrealtime s[80:81]' if opts.get('diag') else ''}
    v_lshrrev_b32 v1, 6, v0
    v_and_b32 v0, 63, v0
    s_getreg_b32 s61, hwreg(HW_REG_HW_ID)
    v_readfirstlane_b32 s60, v1
    s_mov_b32 s{sMODE}, {opts.get('mode0', 0)}
    s_bfe_u32 s62, s61, 0x20004
    s_and_b32 s61, s61, 1
    s_lshl_b32 s61, s61, 1
    s_xor_b32 s62, s62, s61
    s_lshl_b32 s63, 1, s62
    v_mov_b32 v2, s63
    v_mov_b32 v3, {(NRING[0]-1)*16384}
    v_lshl_add_u32 v1, v1, 2, v3
    ds_write_b32 v1, v2
    s_waitcnt lgkmcnt(0)
    s_barrier
    ds_read_b128 v[4:7], v3
    s_waitcnt lgkmcnt(0)
    v_or3_b32 v4, v4, v5, v6
    v_or_b32 v4, v4, v7
    s_nop 0
    v_readfirstlane_b32 s63, v4
    s_nop 1
    s_cmp_eq_u32 s63, 15
    {'s_cselect_b32 s60, s62, s60' if opts.get('roles', 1) else ''}
{K}_restart:
    s_and_b32 s61, s2, 7                   ; xcd
    s_lshr_b32 s62, s2, 3                  ; j
{MAPCODE}
    s_lshl_b32 s{sWID4}, s60, 2""")
    R(f"""    s_lshl_b32 s{sW2048}, s60, 11
    s_mov_b32 s{sTHR}, {f32bits(2.0**40)}
    s_mov_b32 s{sTLO}, {f32bits(2.0**-40)}
    s_mov_b32 s{sSCL}, {f32bits(C_SCALE)}
    s_mov_b32 s{sSCL+1}, {f32bits(C_SCALE)}
{ROTCODE}
    s_mul_i32 s64, s60, 3
    s_lshl_b32 s65, s60, 1
    s_add_u32 s65, s65, 2
    s_min_u32 s64, s64, s65
    s_mul_i32 s{sXR}, s64, {16*1152}
    s_add_u32 s{sXR+1}, s{sXR}, {16*1152}
    s_add_u32 s{sXR+2}, s{sXR}, {32*1152}
    s_lshl_b32 s{sOR}, s64, 17
    s_add_u32 s{sOR+1}, s{sOR}, {1<<17}
    s_add_u32 s{sOR+2}, s{sOR}, {2<<17}
    ; DMA: row_in4 = l/16 ; phi = (l/16) | ((w&1)<<2) ; chunk = (l%16) ^ (2*phi)
    v_lshrrev_b32 v22, 4, v0               ; l/16
    s_and_b32 s65, s60, 1
    s_lshl_b32 s65, s65, 2
    v_or_b32 v23, s65, v22                 ; phi
    v_lshlrev_b32 v23, 1, v23
    v_and_b32 v24, 15, v0
    v_xor_b32 v23, v23, v24
    v_lshlrev_b32 v23, 4, v23              ; chunk*16
    s_lshl_b32 s65, s60, 3
    v_add_u32 v25, s65, v22                ; row = 8w + l/16
    v_lshl_add_u32 v{vDKV}, v25, 8, v23
    v_lshl_add_u32 v{vDWQ}, v25, 13, v23
    ; x voffset = (l/4)*1152 + (l%4)*16 ; shuffle source lane = 4*(l%16) + l/16
    v_lshrrev_b32 v25, 2, v0
    v_and_b32 v26, 3, v0
    v_mul_u32_u24 v{vXO}, 1152, v25
    v_lshl_add_u32 v{vXO}, v26, 4, v{vXO}
    v_lshl_add_u32 v{vXP}, v24, 2, v22
    v_lshlrev_b32 v{vXP}, 2, v{vXP}
    ; K read addr: m=l%16,g=l/16: row=8*(m/4)+m%4; phi=m%8; addr=row*256+(((2s+g/2)^phi)*32)+(g%2)*16
    v_lshrrev_b32 v25, 2, v24
    v_lshlrev_b32 v25, 3, v25
    v_and_b32 v26, 3, v24
    v_add_u32 v25, v25, v26                ; row
    v_lshlrev_b32 v25, 8, v25
    v_and_b32 v26, 1, v22
    v_lshl_add_u32 v25, v26, 4, v25
    v_lshrrev_b32 v26, 1, v22              ; g/2
    v_and_b32 v27, 7, v24
    v_xor_b32 v26, v26, v27
    v_lshl_add_u32 v{vKA}, v26, 5, v25
    {f'v_add_u32 v{vKA}, s{sG64K}, v{vKA}' if W8[0] else ''}
    v_xor_b32 v{vKA+1}, 64, v{vKA}
    v_xor_b32 v{vKA+2}, 0x80, v{vKA}
    v_xor_b32 v{vKA+3}, 0xc0, v{vKA}
    ; tr read addr: g=l/16,r=(l/4)%4,c=l%4: row=8g+r; phi=r|((g&1)<<2); addr=row*256+((t^phi)*32)+c*8
    v_bfe_u32 v25, v0, 2, 2                ; r
    v_lshl_add_u32 v26, v22, 3, v25        ; row
    v_lshlrev_b32 v26, 8, v26
    v_and_b32 v27, 3, v0
    v_lshl_add_u32 v26, v27, 3, v26
    v_and_b32 v27, 1, v22
    v_lshl_or_b32 v25, v27, 2, v25         ; phi
    v_lshl_add_u32 v{vTA}, v25, 5, v26""")
    for t in range(1, 8):
        R(f"    v_xor_b32 v{vTA+t}, {t*32}, v{vTA}")
    SPLITCODE = f"""    ; Q image srd replaces X
    s_lshl_b32 s66, s61, 5
    s_add_u32 s66, s66, s62
    s_mul_i32 s66, s66, 40960
    s_add_u32 s66, s66, {QOFF}
    s_add_u32 s{sX}, s18, s66
    s_addc_u32 s{sX+1}, s19, 0
    s_mov_b32 s{sX+2}, 40960
    s_lshl_b32 s{sXR}, s64, 12
    s_add_u32 s{sXR+1}, s{sXR}, 4096
    s_add_u32 s{sXR+2}, s{sXR}, 8192
    v_lshlrev_b32 v{vXO}, 4, v0""" if SPLIT[0] else ""
    R(f"""    s_waitcnt lgkmcnt(0)
    ; X srd
    s_mul_i32 s66, s61, 184320
    s_add_u32 s{sX}, s4, s66
    s_addc_u32 s{sX+1}, s5, 0
    s_mov_b32 s{sX+2}, 184320
    s_mov_b32 s{sX+3}, 0x20000
    s_lshl_b32 s66, s61, 5
    s_add_u32 s66, s66, s62
    s_lshl_b32 s66, s66, 17
    {'s_mov_b32 s66, 0' if opts.get('kv_same') else ''}
    s_add_u32 s{sK}, s6, s66
    s_addc_u32 s{sK+1}, s7, 0
    s_mov_b32 s{sK+2}, 131072
    s_mov_b32 s{sK+3}, 0x20000
    s_add_u32 s{sV}, s8, s66
    s_addc_u32 s{sV+1}, s9, 0
    s_mov_b32 s{sV+2}, 131072
    s_mov_b32 s{sV+3}, 0x20000
    s_lshl_b32 s66, s62, 8
    s_add_u32 s{sWQ}, s10, s66
    s_addc_u32 s{sWQ+1}, s11, 0
    s_sub_u32 s{sWQ+2}, {576*8192}, s66
    s_mov_b32 s{sWQ+3}, 0x20000
    s_mul_i32 s66, s61, {10*131072}
    s_lshl_b32 s67, s62, 12
    s_add_u32 s66, s66, s67
    s_add_u32 s{sO}, s18, s66
    s_addc_u32 s{sO+1}, s19, 0
    s_mov_b32 s{sO+2}, {10*131072}
    s_mov_b32 s{sO+3}, 0x20000
{SPLITCODE}
    ; Wo transposition helpers (used by NT=2 waves)
    s_mov_b32 s{sWO}, s12
    s_mov_b32 s{sWO+1}, s13
    s_mov_b32 s{sWO+2}, {4096*1152}
    s_mov_b32 s{sWO+3}, 0x20000
    s_add_u32 s{sWT}, s18, {WOFF}
    s_addc_u32 s{sWT+1}, s19, 0
    s_mov_b32 s{sWT+2}, {6144*1024}
    s_mov_b32 s{sWT+3}, 0x20000
    s_lshl_b32 s66, s2, 1
    {f's_add_u32 s66, s66, s{sG}' if W8[0] else ''}
    {f's_lshl_b32 s66, s66, 1' if W8[0] else ''}
    s_and_b32 s67, s60, 1
    s_add_u32 s66, s66, s67                ; W2
{WOMAP}
    s_lshl_b32 s{sWOF}, s66, 10
    s_and_b32 s67, s66, 127                ; ks
    s_mul_i32 s67, s67, {32*1152}
    s_lshr_b32 s66, s66, 7                 ; t
    s_lshl_b32 s66, s66, 5
    s_add_u32 s{sWOB}, s66, s67
    s_mul_i32 s{sKVR}, s61, {opts.get('kvrot', 0)}
    s_add_u32 s{sKVR}, s{sKVR}, s62
    s_lshl_b32 s{sKVR}, s{sKVR}, 13
    s_cmp_ge_u32 s60, 2
    s_cbranch_scc1 {K}_nt2""")
    gen_body(p, 3, K + "_a", opts)
    p.label(f"{K}_nt2")
    p.hist = []; p.vm = []; p.lgkm = []
    R(f"""    v_mul_u32_u24 v{vWOA}, {4*1152}, v22
    v_lshl_add_u32 v{vWOA}, v24, 1, v{vWOA}""")
    if opts.get('dma2', 1):
        R(f"""    ; DMA by roles 2,3: rows 16r'+4i+l/16 ; chunk = (l%16) ^ (2*(l/16)) ^ (8*((i>>1)&1))
    s_and_b32 s65, s60, 1
    s_lshl_b32 s{sW2048}, s65, 12
    {f's_lshl_b32 s{sMW}, s{sG}, 13' if W8[0] else ''}
    {f's_add_u32 s{sMW}, s{sMW}, s{sW2048}' if W8[0] else ''}
    {f's_add_u32 s{sW2048}, s{sW2048}, s{sG64K}' if W8[0] else ''}
    v_lshlrev_b32 v23, 1, v22
    v_xor_b32 v23, v23, v24
    v_lshlrev_b32 v23, 4, v23
    s_lshl_b32 s65, s65, 4
    v_add_u32 v25, s65, v22
    v_lshl_add_u32 v{vDKV}, v25, 8, v23
    v_lshl_add_u32 v{vDWQ}, v25, 13, v23
    v_xor_b32 v{vDKV1}, 0x80, v{vDKV}
    v_xor_b32 v{vDWQ1}, 0x80, v{vDWQ}""")
    gen_body(p, 2, K + "_b", opts)
    p.label(f"{K}_done")
    R("    s_endpgm")
    if opts.get('merge'):
        from kern_m import gen_b_merged
        gen_b_merged(p, K, opts)
    desc = f""".amdhsa_kernel {K}
  .amdhsa_next_free_vgpr 256
  .amdhsa_next_free_sgpr 102
  .amdhsa_accum_offset 256
  .amdhsa_group_segment_fixed_size 0
  .amdhsa_kernarg_size 64
  .amdhsa_user_sgpr_count 2
  .amdhsa_user_sgpr_kernarg_segment_ptr 1
  .amdhsa_system_sgpr_workgroup_id_x 1
.end_amdhsa_kernel"""
    if W8[0]: return p, desc, f"; @launch kernel={K} grid=(512,1,1) block=(512,1,1) lds={FLGB+256}"
    if opts.get('merge'): return p, desc, f"; @launch kernel={K} grid=(1280,1,1) block=(256,1,1) lds=81920"
    return p, desc, f"; @launch kernel={K} grid=(1024,1,1) block=(256,1,1) lds={NRING[0]*16384}"
```

```python
from asmlib import *
WOFF = 48 << 20
DEPTH = 4
def gen_kernel_b(opts=None):
    opts = opts or {}
    p = Prog()
    K = "oproj_kernel"
    p.raw(f".globl {K}\n.p2align 8\n.type {K},@function\n{K}:")
    R = p.raw
    sO, sW, sD = 20, 24, 28
    sOR = 32
    sWT = 40
    sQ = 50
    vOFF, vST, vRD = 1, 2, 3
    vWR = 4
    BUF = 8
    OB = lambda d, r: BUF + (d*14 + r)*4
    WB = lambda d, t: BUF + (d*14 + 5 + t)*4
    AC = lambda t, r: (t*5 + r)*4
    R(f"""    s_cmp_ge_u32 s2, {opts.get("b_lim", 256)}
    s_cbranch_scc1 {K}_done
    s_load_dwordx4 s[4:7], s[0:1], 40
    s_load_dwordx2 s[8:9], s[0:1], 56
    v_lshrrev_b32 v1, 6, v0
    v_and_b32 v0, 63, v0
    s_nop 0
    v_readfirstlane_b32 s60, v1
    s_and_b32 s61, s2, 7                   ; xcd
    s_lshr_b32 s62, s2, 3                  ; j
    s_and_b32 s63, s62, 3                  ; Ntile
    s_lshr_b32 s62, s62, 2
    s_lshl_b32 s61, s61, 3
    s_add_u32 s61, s61, s62                ; Mtile
    s_lshl_b32 s64, s60, 15
    s_mov_b32 s{sOR}, s64""")
    EXP = opts.get('b_exp', 0)
    if EXP:
        R(f"""    s_lshr_b32 s68, s60, 1                 ; kq
    s_and_b32 s69, s60, 1                  ; rh
    s_and_b32 s70, s61, 1                  ; khalf
    s_lshl_b32 s70, s70, 1
    s_add_u32 s70, s70, s68
    s_lshl_b32 s64, s70, 15
    s_mul_i32 s69, s69, {5<<17}
    s_add_u32 s{sOR}, s69, s64""")
    for r in range(1, 5):
        R(f"    s_add_u32 s{sOR+r}, s{sOR}, {r<<17}")
    for tt in range(8):
        R(f"""    s_lshl_b32 s65, {'s68, 2' if EXP else 's60, 1'}
    s_add_u32 s65, s65, {tt}
    s_and_b32 s65, s65, 7
    s_lshl_b32 s65, s65, 17
    s_add_u32 s{sWT+tt}, s65, s64""")
    R(f"    s_add_u32 s{sWT+8}, s64, {8<<17}")
    for r in range(5):
        R(f"    s_mov_b32 s{sQ+r}, {r*16*1152}")
    R(f"""    v_lshlrev_b32 v{vOFF}, 4, v0
    v_and_b32 v8, 15, v0
    v_lshrrev_b32 v9, 4, v0
    v_mul_u32_u24 v{vST}, 1152, v8
    v_lshl_add_u32 v10, v9, 3, v{vST}      ; singles: q*1152 + g*8
    v_lshl_add_u32 v{vST}, v9, 4, v{vST}
    s_lshl_b32 s65, s60, 6
    v_add_u32 v{vST}, s65, v{vST}
    s_mul_i32 s65, s60, 30720
    v_add_u32 v{vRD}, s65, v{vOFF}""")
    for pp in range(1, 4):
        R(f"""    s_add_u32 s65, s60, {pp}
    s_and_b32 s65, s65, 3
    s_mul_i32 s65, s65, 30720
    s_add_u32 s65, s65, {(3-pp)*10240}
    v_add_u32 v{vWR+pp-1}, s65, v{vOFF}""")
    R(f"""    s_mul_i32 s65, s60, 5120
    s_add_u32 s65, s65, 122880
    v_add_u32 v{vWR+3}, s65, v{vOFF}
    v_mov_b32 v232, v10
    s_lshl_b32 s65, s60, 10
    s_add_u32 s65, s65, 122880
    v_add_u32 v233, s65, v{vOFF}
    s_mul_i32 s66, s60, {16*1152}
    s_waitcnt lgkmcnt(0)
    s_and_b32 s65, s61, {opts.get('b_mask', 0xfe if EXP else 0xff)}
    s_mul_i32 s65, s65, {5<<17}
    s_add_u32 s{sO}, s8, s65
    s_addc_u32 s{sO+1}, s9, 0
    s_mov_b32 s{sO+2}, {(10 if EXP else 5)<<17}
    s_mov_b32 s{sO+3}, 0x20000
    s_mul_i32 s65, s63, {9<<17}
    s_add_u32 s65, s65, {WOFF}
    s_add_u32 s{sW}, s8, s65
    s_addc_u32 s{sW+1}, s9, 0
    s_mov_b32 s{sW+2}, {9<<17}
    s_mov_b32 s{sW+3}, 0x20000
    s_mul_i32 s65, s61, {80*1152}
    s_mul_i32 s67, s63, 288
    s_add_u32 s65, s65, s67
    s_add_u32 s{sD}, s4, s65
    s_addc_u32 s{sD+1}, s5, 0
    s_mov_b32 s{sD+2}, {79*1152+288}
    s_mov_b32 s{sD+3}, 0x20000""")
    NK = opts.get('b_nk', 32)
    vOFF2 = 234
    vo = lambda ks: (vOFF if (ks//4) % 2 == 0 else vOFF2)
    def ldO(ks, r): return buf_load4(OB(ks % DEPTH, r), vo(ks), sO, s(sOR+r), (ks % 4)*1024, flags=opts.get('b_flags', ''))
    def ldW(ks, t): return buf_load4(WB(ks % DEPTH, t), vo(ks), sW, s(sWT+t), (ks % 4)*1024, flags=opts.get('b_flags', ''))
    for ks in range(DEPTH):
        for r in range(5): p.emit(ldO(ks, r))
        for t in range(9): p.emit(ldW(ks, t))
    for ks in range(NK):
        nk = ks + DEPTH
        if nk < NK and nk % 4 == 0:
            p.emit(valu("v_add_u32", v(vo(nk)), 4096, v(vo(nk-4))))
        for t in range(9):
            for r in range(5):
                if opts.get('b_nomf') and not (r == 4 or t == 8): pass
                else: p.emit(mfma16a(AC(t, r), WB(ks % DEPTH, t), OB(ks % DEPTH, r), zero=(ks == 0)))
                if nk < NK and t == 8: p.emit(ldO(nk, r))
            if nk < NK and t < 8: p.emit(ldW(nk, t))
        if nk < NK: p.emit(ldW(nk, 8))
    for pp in range(1, 4):
        for h in range(2):
            for r in range(5):
                p.emit(ds_write_b128a(vWR+pp-1, AC(2*pp+h, r), (h*5+r)*1024))
    for r in range(5):
        p.emit(ds_write_b128a(vWR+3, AC(8, r), r*1024))
    OWN = 8
    PART = 48
    SG = 168
    for i in range(40): p.emit(accread(OWN+i, i))
    p.wait(lgkm=0)
    p.emit(barrier())
    def single(base, rdoff, addr, soff):
        for w in range(4):
            p.emit(ds_read_b128(base+4*w, addr, rdoff + w*5120))
        return
    def single_fin(base, soff):
        for i in range(0, 4, 2):
            for (x, y) in ((0, 4), (8, 12), (0, 8)):
                p.emit(Ins(f"v_pk_add_f32 {vr(base+x+i,2)}, {vr(base+x+i,2)}, {vr(base+y+i,2)}", 'valu',
                           rd=V(base+x+i,2)+V(base+y+i,2), wr=V(base+x+i,2)))
        p.emit(valu("v_cvt_pk_bf16_f32", v(base), v(base), v(base+1)))
        p.emit(valu("v_cvt_pk_bf16_f32", v(base+1), v(base+2), v(base+3)))
        p.emit(buf_store(base, 2, 232, sD, soff, 256))
    for r in range(5):
        for h in range(2):
            for sidx in range(3):
                p.emit(ds_read_b128(PART + ((r*2+h)*3+sidx)*4, vRD, sidx*10240 + (h*5+r)*1024))
        if r == 1: single(SG, 0, 233, None)
    for r in range(5):
        for h in range(2):
            o = OWN + (h*5+r)*4
            for sidx in range(3):
                q = PART + ((r*2+h)*3+sidx)*4
                for i in (0, 2):
                    p.emit(Ins(f"v_pk_add_f32 {vr(o+i,2)}, {vr(o+i,2)}, {vr(q+i,2)}", 'valu',
                               rd=V(o+i,2)+V(q+i,2), wr=V(o+i,2)))
        a = OWN + r*4; b = OWN + (5+r)*4; q = 200 + r*4
        p.emit(valu("v_cvt_pk_bf16_f32", v(q), v(a), v(a+1)))
        p.emit(valu("v_cvt_pk_bf16_f32", v(q+1), v(a+2), v(a+3)))
        p.emit(valu("v_cvt_pk_bf16_f32", v(q+2), v(b), v(b+1)))
        p.emit(valu("v_cvt_pk_bf16_f32", v(q+3), v(b+2), v(b+3)))
        p.emit(permswap(32, q, q+2)); p.emit(permswap(32, q+1, q+3))
        p.emit(permswap(16, q, q+2)); p.emit(permswap(16, q+1, q+3))
        p.emit(buf_store(q, 4, vST, sD, s(sQ+r), 0))
        if r == 1: single_fin(SG, s(66))
    p.raw(f"    s_cmp_lg_u32 s60, 0\n    s_cbranch_scc1 {K}_done")
    single(SG+16, 4096, 233, None)
    single_fin(SG+16, s(sQ+4))
    p.label(f"{K}_done")
    R("    s_endpgm")
    desc = f""".amdhsa_kernel {K}
  .amdhsa_next_free_vgpr 512
  .amdhsa_next_free_sgpr 96
  .amdhsa_accum_offset 256
  .amdhsa_group_segment_fixed_size 0
  .amdhsa_kernarg_size 64
  .amdhsa_user_sgpr_count 2
  .amdhsa_user_sgpr_kernarg_segment_ptr 1
  .amdhsa_system_sgpr_workgroup_id_x 1
.end_amdhsa_kernel"""
    return p, desc, f"; @launch kernel={K} grid=(256,1,1) block=(256,1,1) lds=143360"
```

```python
from asmlib import *
WOFF = 48 << 20
PITCH = 15360; NRB = 5
def gen_b_merged(p, K, opts, first_id=1024, wait=True):
    R = p.raw
    sWS, sD, sDB = 20, 24, 28
    sB = 32
    sM0 = 38; sQ = 40
    sT0 = 46
    vDO, vRO, vRO2, vRW, vST, vS1, vP = 1, 2, 3, 4, 5, 6, 7
    ACC = lambda t, r: 16 + (t*5 + r)*4
    OF = lambda ks, r: 80 + ((ks % 2)*5 + r)*4
    WF = lambda ks, t: 120 + ((ks % 2)*3 + t)*4
    NK = 128
    R(f"""{K}_bentry:
    s_cmp_ge_u32 s2, {first_id + 256}
    s_cbranch_scc1 {K}_bdone
    s_load_dwordx4 s[4:7], s[0:1], 40
    s_load_dwordx2 s[8:9], s[0:1], 56
    s_memrealtime s[{sT0}:{sT0+1}]
    v_lshrrev_b32 v1, 6, v0
    v_and_b32 v0, 63, v0
    s_sub_u32 s59, s2, {first_id}
    v_readfirstlane_b32 s60, v1
    s_and_b32 s61, s59, 7                  ; xcd
    s_lshr_b32 s62, s59, 3                 ; j
    s_and_b32 s63, s62, 3                  ; Ntile
    s_lshr_b32 s62, s62, 2
    s_lshl_b32 s61, s61, 3
    s_add_u32 s61, s61, s62                ; Mtile
    s_mul_i32 s64, s61, {5<<17}
    s_mul_i32 s65, s63, {9<<17}
    s_add_u32 s65, s65, {WOFF}
    s_add_u32 s66, s65, {5<<17}
    s_cmp_eq_u32 s60, 2
    s_cselect_b32 s64, s65, s64
    s_cmp_eq_u32 s60, 3
    s_cselect_b32 s{sB}, s66, s64
    s_mov_b32 s67, {4*131072}
    s_cselect_b32 s67, {3*131072}, s67
    s_add_u32 s{sB+1}, s{sB}, {131072 - 1024}
    s_add_u32 s{sB+2}, s{sB}, {2*131072 - 2048}
    s_add_u32 s{sB+3}, s{sB}, {3*131072 - 3072}
    s_add_u32 s{sB+4}, s{sB}, s67
    s_max_u32 s67, s60, 1
    s_sub_u32 s67, s67, 1
    s_mul_i32 s{sM0}, s67, 5120
    v_lshlrev_b32 v{vDO}, 4, v0
    v_lshlrev_b32 v{vRO}, 4, v0
    v_add_u32 v{vRO2}, 4096, v{vRO}
    s_lshl_b32 s67, s60, 11
    s_add_u32 s67, s67, 5120
    v_add_u32 v{vRW}, s67, v{vRO}
    v_and_b32 v8, 15, v0
    v_lshrrev_b32 v9, 4, v0
    v_mul_u32_u24 v{vST}, 1152, v8
    v_lshl_add_u32 v{vS1}, v9, 3, v{vST}
    v_lshl_add_u32 v{vST}, v9, 4, v{vST}
    s_lshl_b32 s67, s60, 6
    v_add_u32 v{vST}, s67, v{vST}""")
    for r in range(5): R(f"    s_mov_b32 s{sQ+r}, {r*16*1152}")
    R(f"""    s_waitcnt lgkmcnt(0)
    s_mov_b32 s{sWS}, s8
    s_mov_b32 s{sWS+1}, s9
    s_mov_b32 s{sWS+2}, {WOFF + 36*131072}
    s_mov_b32 s{sWS+3}, 0x20000
    s_mov_b32 s{sDB}, s6
    s_mov_b32 s{sDB+1}, s7
    s_mov_b32 s{sDB+2}, 256
    s_mov_b32 s{sDB+3}, 0x20000
    s_mul_i32 s65, s61, {80*1152}
    s_mul_i32 s67, s63, 288
    s_add_u32 s65, s65, s67
    s_add_u32 s{sD}, s4, s65
    s_addc_u32 s{sD+1}, s5, 0
    s_mov_b32 s{sD+2}, {79*1152+288}
    s_mov_b32 s{sD+3}, 0x20000
    s_cmp_lg_u32 s60, 0
    s_cbranch_scc1 {K}_b2""")
    def body(NC, name):
        p.hist = []; p.vm = []; p.lgkm = []
        DM = (NC == 2)
        def poll(g):
            if not wait: return
            p.nop(2)
            R(f"""{name}_poll{g}:
    buffer_load_dword v{vP}, off, s[{sDB}:{sDB+3}], 0 offset:{g*64} sc0 sc1
    s_memrealtime s[48:49]
    s_waitcnt vmcnt(0) lgkmcnt(0)
    v_readfirstlane_b32 s50, v{vP}
    s_sub_u32 s48, s48, s{sT0}
    s_nop 1
    s_cmp_ge_u32 s50, 1024
    s_cbranch_scc1 {name}_go{g}
    s_sleep {opts.get('m_sleep', 8)}
    s_cmp_lt_u32 s48, 3000000
    s_cbranch_scc1 {name}_poll{g}
{name}_go{g}:
    {f's_add_u32 s{52+g}, s48, 0' if opts.get('diag') else ''}""")
            p.vm = []; p.lgkm = []; p.hist = []
        def dma_units(ks):
            if ks >= NK or not DM: return []
            U = []
            for i in range(5):
                u = []
                if i == 0:
                    u.append(salu(f"s_add_u32 m0, s{sM0}, {(ks % NRB)*PITCH}", rd=S(sM0), wr=[('s','m0')]))
                    if ks: u.append(valu("v_add_u32", v(vDO), 1024, v(vDO)))
                if i == 4: u.append(salu(f"s_add_u32 m0, s{sM0}, {(ks % NRB)*PITCH + 4096}", rd=S(sM0), wr=[('s','m0')]))
                u.append(buf_dma4(vDO, sWS, s(sB+i), (i % 4)*1024, tag=('dma', ks)))
                U.append(u)
            return U
        def reads(ks):
            if ks >= NK: return []
            sl = (ks % NRB)*PITCH
            L = [ds_read_b128(WF(ks, 0), vRW, sl)]
            L += [ds_read_b128(OF(ks, r), vRO if r < 4 else vRO2, sl + (r % 4)*1024) for r in range(5)]
            L.append(ds_read_b128(WF(ks, 1), vRW, sl + 1024))
            if NC == 3: L.append(ds_read_b128(WF(ks, 2), vRW, sl + 8192) if sl + 8192 < 65536 else ds_read_b128(WF(ks, 2), vP, sl))
            return L
        def sync(ks):
            if ks >= NK: return []
            p.wait_tag(('dma', ks), lgkm=0)
            p.emit(barrier())
            nk = ks + NRB - 1
            if DM and nk % 32 == 0 and nk < NK: poll(nk // 32)
            return dma_units(nk)
        if NC == 3: p.emit(valu("v_add_u32", v(vP), 8192, v(vRW)))
        if DM: poll(0)
        for ks in range(NRB - 1):
            for u in dma_units(ks):
                for i_ in u: p.emit(i_)
        dq = sync(0)
        for i_ in reads(0): p.emit(i_)
        for u in dq:
            for i_ in u: p.emit(i_)
        for ks in range(NK):
            dq = sync(ks + 1)
            rq = reads(ks + 1)
            for t in range(NC):
                for r in range(5):
                    p.emit(mfma16(ACC(t, r), WF(ks, t), OF(ks, r), None if ks == 0 else ACC(t, r)))
                    if rq: p.emit(rq.pop(0))
                    if dq and (t*5 + r) % 2 == 1:
                        for i_ in dq.pop(0): p.emit(i_)
            assert not rq and not dq
        for r in range(5):
            a = ACC(0, r); b = ACC(1, r); q = 80 + r*4
            p.emit(valu("v_cvt_pk_bf16_f32", v(q), v(a), v(a+1)))
            p.emit(valu("v_cvt_pk_bf16_f32", v(q+1), v(a+2), v(a+3)))
            p.emit(valu("v_cvt_pk_bf16_f32", v(q+2), v(b), v(b+1)))
            p.emit(valu("v_cvt_pk_bf16_f32", v(q+3), v(b+2), v(b+3)))
            p.emit(permswap(32, q, q+2)); p.emit(permswap(32, q+1, q+3))
            p.emit(permswap(16, q, q+2)); p.emit(permswap(16, q+1, q+3))
            p.emit(buf_store(q, 4, vST, sD, s(sQ+r), 0))
            if NC == 3:
                c = ACC(2, r); q2 = 120 + r*2
                p.emit(valu("v_cvt_pk_bf16_f32", v(q2), v(c), v(c+1)))
                p.emit(valu("v_cvt_pk_bf16_f32", v(q2+1), v(c+2), v(c+3)))
                p.emit(buf_store(q2, 2, vS1, sD, s(sQ+r), 256))
        if opts.get('diag') and DM:
            R(f"""    s_memrealtime s[48:49]
    s_waitcnt vmcnt(0) lgkmcnt(0)
    v_mov_b32 v28, s{sT0}
    v_mov_b32 v29, s48
    v_mov_b32 v30, s52
    v_mov_b32 v31, s53
    v_mov_b32 v32, s54
    v_mov_b32 v33, s55
    s_lshl_b32 s48, s2, 2
    s_add_u32 s48, s48, s60
    s_lshl_b32 s48, s48, 5
    s_add_u32 s48, s48, {56<<20}
    s_mov_b32 s{sWS+2}, {64<<20}
    v_mov_b32 v36, 0
    s_nop 4
    buffer_store_dwordx4 v[28:31], v36, s[{sWS}:{sWS+3}], s48 offen
    buffer_store_dwordx2 v[32:33], v36, s[{sWS}:{sWS+3}], s48 offen offset:16""")
        R("    s_endpgm")
    body(3, K + "_bb3")
    p.label(f"{K}_b2")
    body(2, K + "_bb2")
    p.label(f"{K}_bdone")
    R("    s_endpgm")

def gen_kernel_b2(opts):
    p = Prog(); K = "oproj_kernel"
    p.raw(f".globl {K}\n.p2align 8\n.type {K},@function\n{K}:")
    gen_b_merged(p, K, opts, first_id=0, wait=False)
    desc = f""".amdhsa_kernel {K}
  .amdhsa_next_free_vgpr 160
  .amdhsa_next_free_sgpr 96
  .amdhsa_accum_offset 160
  .amdhsa_group_segment_fixed_size 0
  .amdhsa_kernarg_size 64
  .amdhsa_user_sgpr_count 2
  .amdhsa_user_sgpr_kernarg_segment_ptr 1
  .amdhsa_system_sgpr_workgroup_id_x 1
.end_amdhsa_kernel"""
    return p, desc, f"; @launch kernel={K} grid=(256,1,1) block=(256,1,1) lds={opts.get('b2lds', 90112)}"
```

```python
from asmlib import *
import math, struct
C_SCALE = math.log2(math.e) / math.sqrt(128.0)
def f32bits(x): return "0x%08x" % struct.unpack('<I', struct.pack('<f', x))[0]
QOFF = 64 << 20
NR = 3
XB = 0; WB = 30720; DUM = WB + 3*16384
def gen_kernel_q(opts=None):
    opts = opts or {}
    p = Prog()
    K = "qproj_kernel"
    p.raw(f".globl {K}\n.p2align 8\n.type {K},@function\n{K}:")
    R = p.raw
    sX, sWQ, sQ = 20, 24, 28
    sSO = 32; sMW = 33; sMX = 34; sXR = 36
    sM3 = 40
    sSCL = 44; sQO = 46; sX3 = 48
    vDW, vDW1, vDX, vXA, vTA = 1, 2, 3, 4, 5
    vST = 9
    ACC = lambda t, n: 16 + (n*4 + t)*4
    AF = lambda ks, t: 176 + ((ks % 2)*4 + t)*4
    NB = 12
    BF = lambda i: 208 + (i % NB)*4
    R(f"""    s_cmp_ge_u32 s2, 512
    s_cbranch_scc1 {K}_done
    s_load_dwordx2 s[4:5], s[0:1], 0
    s_load_dwordx2 s[6:7], s[0:1], 24
    s_load_dwordx2 s[8:9], s[0:1], 56
    v_lshrrev_b32 v1, 6, v0
    v_and_b32 v0, 63, v0
    s_nop 0
    v_readfirstlane_b32 s60, v1            ; wave
    s_and_b32 s61, s2, 7
    s_lshr_b32 s62, s2, 3                  ; j 0..63
    s_and_b32 s63, s62, 3
    s_lshl_b32 s61, s61, 2
    s_add_u32 s61, s61, s63                ; b
    s_lshr_b32 s62, s62, 2
    s_mov_b32 s{sSCL}, {f32bits(C_SCALE)}
    s_mov_b32 s{sSCL+1}, {f32bits(C_SCALE)}
    v_lshrrev_b32 v22, 4, v0               ; l/16
    v_and_b32 v24, 15, v0
    s_and_b32 s65, s60, 1
    s_lshr_b32 s66, s60, 1
    s_lshl_b32 s{sMW}, s60, 12
    s_add_u32 s{sMW}, s{sMW}, {WB}
    v_lshlrev_b32 v23, 1, v22
    v_xor_b32 v23, v23, v24
    v_lshlrev_b32 v23, 4, v23
    s_lshl_b32 s67, s66, 8
    v_add_u32 v23, s67, v23
    s_lshl_b32 s67, s65, 4
    v_add_u32 v25, s67, v22
    v_lshl_add_u32 v{vDW}, v25, 13, v23
    v_xor_b32 v{vDW1}, 0x80, v{vDW}
    ; x DMA: q=l/4, chunk=(l%4)^f(q/4), f(j)=(((j^(j>>1))&1)<<1)|(j>>1), j = l/16
    v_lshrrev_b32 v25, 1, v22
    v_xor_b32 v26, v25, v22
    v_and_b32 v26, 1, v26
    v_lshl_or_b32 v26, v26, 1, v25         ; f(l/16)
    v_and_b32 v27, 3, v0
    v_xor_b32 v27, v27, v26
    v_lshrrev_b32 v25, 2, v0
    v_mul_u32_u24 v{vDX}, 1152, v25
    v_lshl_add_u32 v{vDX}, v27, 4, v{vDX}
    s_lshl_b32 s{sMX}, s60, 10
    s_mul_i32 s{sXR}, s60, {16*1152}
    s_add_u32 s{sXR+1}, s{sXR}, {64*1152}
    s_add_u32 s{sXR+2}, s{sXR}, {128*1152}
    s_cmp_lt_u32 s60, 2
    s_cselect_b32 s{sXR+2}, s{sXR+2}, 0""")
    for i in range(3):
        R(f"""    s_add_u32 s67, s{sMX}, {XB + i*10240 + 8192}
    s_cmp_lt_u32 s60, 2
    s_cselect_b32 s{sM3+i}, s67, {DUM}""")
    R(f"""    ; x read: q=l%16,g=l/16: q*64 + ((g ^ f(q/4))*16)
    v_lshrrev_b32 v25, 2, v24              ; j
    v_lshrrev_b32 v26, 1, v25
    v_xor_b32 v27, v26, v25
    v_and_b32 v27, 1, v27
    v_lshl_or_b32 v27, v27, 1, v26
    v_xor_b32 v27, v27, v22
    v_lshlrev_b32 v27, 4, v27
    v_lshl_add_u32 v{vXA}, v24, 6, v27
    v_bfe_u32 v25, v0, 2, 2
    v_lshl_add_u32 v26, v22, 3, v25
    v_lshlrev_b32 v26, 8, v26
    v_and_b32 v27, 3, v0
    v_lshl_add_u32 v26, v27, 3, v26
    v_and_b32 v27, 1, v22
    v_lshl_or_b32 v25, v27, 2, v25
    s_lshl_b32 s67, s65, 2
    v_xor_b32 v25, s67, v25
    v_lshl_add_u32 v26, v25, 5, v26
    s_lshl_b32 s67, s66, 13
    s_add_u32 s67, s67, {WB}""")
    for t in range(4):
        R(f"    v_xor_b32 v{vTA+t}, {t*32}, v26\n    v_add_u32 v{vTA+t}, s67, v{vTA+t}")
    R(f"""    v_lshlrev_b32 v{vST}, 4, v0
    s_waitcnt lgkmcnt(0)
    s_mul_i32 s67, s61, 184320
    s_add_u32 s{sX}, s4, s67
    s_addc_u32 s{sX+1}, s5, 0
    s_mov_b32 s{sX+2}, 184320
    s_mov_b32 s{sX+3}, 0x20000
    s_lshl_b32 s67, s62, 9
    s_add_u32 s{sWQ}, s6, s67
    s_addc_u32 s{sWQ+1}, s7, 0
    s_sub_u32 s{sWQ+2}, {576*8192}, s67
    s_mov_b32 s{sWQ+3}, 0x20000
    s_lshl_b32 s67, s61, 5
    s_lshl_b32 s68, s62, 1
    s_add_u32 s67, s67, s68
    s_add_u32 s67, s67, s66
    s_mul_i32 s67, s67, 40960
    s_add_u32 s67, s67, {QOFF}
    s_add_u32 s{sQ}, s8, s67
    s_addc_u32 s{sQ+1}, s9, 0
    s_mov_b32 s{sQ+2}, 40960
    s_mov_b32 s{sQ+3}, 0x20000
    s_lshl_b32 s{sQO}, s65, 11""")
    NK = 18
    def dma_units(ks):
        if ks >= NK: return []
        sl = ks % NR
        U = []
        for i in range(4):
            u = []
            if i == 0: u.append(salu(f"s_add_u32 m0, s{sMW}, {sl*16384}", rd=S(sMW), wr=[('s','m0')]))
            u.append(salu(f"s_mov_b32 s{sSO}, {ks*32*8192 + i*(4*8192-1024)}", wr=S(sSO)))
            u.append(buf_dma4((vDW, vDW1)[i >> 1], sWQ, s(sSO), i*1024, tag=('dma', ks)))
            U.append(u)
        for i in range(3):
            u = []
            if i < 2: u.append(salu(f"s_add_u32 m0, s{sMX}, {XB + sl*10240 + i*4096}", rd=S(sMX), wr=[('s','m0')]))
            else: u.append(salu(f"s_mov_b32 m0, s{sM3+sl}", rd=S(sM3+sl), wr=[('s','m0')]))
            u.append(salu(f"s_add_u32 s{sSO}, s{sXR+i}, {ks*64}", rd=S(sXR+i), wr=S(sSO)))
            u.append(buf_dma4(vDX, sX, s(sSO), 0, tag=('dma', ks)))
            U.append(u)
        return U
    dq = []
    def flush():
        while dq:
            for i_ in dq.pop(0): p.emit(i_)
    for ks in range(NR - 1):
        dq.extend(dma_units(ks)); flush()
    RD = []
    for ks in range(NK):
        sl = ks % NR
        for t in range(4):
            RD.append((ks, 'A', t, [ds_read_tr(AF(ks,t), vTA+t, sl*16384), ds_read_tr(AF(ks,t)+2, vTA+t, sl*16384+1024)]))
        for n in range(10):
            RD.append((ks, 'B', n, [ds_read_b128(BF(ks*10+n), vXA, XB + sl*10240 + n*1024)]))
    rp = [0]; synced = [-1]
    LAG = opts.get('q_lag', 4)
    def try_reads(done_b, maxn):
        k = 0
        while k < maxn and rp[0] < len(RD):
            ks, kind, i, ins = RD[rp[0]]
            if kind == 'A':
                if (ks - 2)*10 + 9 > done_b: return
            else:
                if ks*10 + i - NB > done_b: return
            if ks > synced[0]:
                if ks*10 - 1 - done_b > LAG: return
                flush()
                p.wait_tag(('dma', ks), lgkm=0)
                p.emit(barrier())
                dq.extend(dma_units(ks + NR - 1))
                synced[0] = ks
            for i_ in ins: p.emit(i_)
            rp[0] += 1; k += 1
    try_reads(-1, 14)
    mc = 0
    for ks in range(NK):
        for n in range(10):
            for t in range(4):
                p.emit(mfma16(ACC(t,n), AF(ks,t), BF(ks*10+n), None if ks == 0 else ACC(t,n)))
                g = ks*10 + n
                try_reads(g if t == 3 else g - 1, 1)
                mc += 1
                if dq and mc % opts.get('q_gap', 4) == 0:
                    for i_ in dq.pop(0): p.emit(i_)
    for n in range(10):
        for sp in range(2):
            a = ACC(2*sp, n); b = ACC(2*sp+1, n); q = 176 + ((n*2+sp) % 16)*4
            for base in (a, b):
                for i in range(4):
                    p.emit(valu("v_mul_f32", v(base+i), s(sSCL), v(base+i)))
            p.emit(valu("v_cvt_pk_bf16_f32", v(q), v(a), v(a+1)))
            p.emit(valu("v_cvt_pk_bf16_f32", v(q+1), v(a+2), v(a+3)))
            p.emit(valu("v_cvt_pk_bf16_f32", v(q+2), v(b), v(b+1)))
            p.emit(valu("v_cvt_pk_bf16_f32", v(q+3), v(b+2), v(b+3)))
        for sp in range(2):
            q = 176 + ((n*2+sp) % 16)*4
            p.emit(permswap(32, q, q+2)); p.emit(permswap(32, q+1, q+3))
        for sp in range(2):
            q = 176 + ((n*2+sp) % 16)*4
            p.emit(permswap(16, q, q+2)); p.emit(permswap(16, q+1, q+3))
        p.emit(salu(f"s_add_u32 s{sSO}, s{sQO}, {n*4096}", rd=S(sQO), wr=S(sSO)))
        for sp in range(2):
            q = 176 + ((n*2+sp) % 16)*4
            ins = buf_store(q, 4, vST, sQ, s(sSO), sp*1024)
            ins.wr = set(V(q, 4))
            p.emit(ins)
    p.label(f"{K}_done")
    R("    s_endpgm")
    desc = f""".amdhsa_kernel {K}
  .amdhsa_next_free_vgpr 256
  .amdhsa_next_free_sgpr 96
  .amdhsa_accum_offset 256
  .amdhsa_group_segment_fixed_size 0
  .amdhsa_kernarg_size 64
  .amdhsa_user_sgpr_count 2
  .amdhsa_user_sgpr_kernarg_segment_ptr 1
  .amdhsa_system_sgpr_workgroup_id_x 1
.end_amdhsa_kernel"""
    return p, desc, f"; @launch kernel={K} grid=(512,1,1) block=(256,1,1) lds={DUM+1024}"
```
